```python
import torch

def _softmax(x, axis=-1):
    return torch.softmax(x, dim=axis)
def _gelu(x):
    return torch.nn.functional.gelu(x, approximate="tanh")
def _silu(x):
    return torch.nn.functional.silu(x)
def _sigmoid(x):
    return torch.sigmoid(x)
def _layernorm(x, axis=-1, eps=1e-5):
    m = x.mean(dim=axis, keepdim=True)
    v = x.var(dim=axis, keepdim=True, unbiased=False)
    return (x - m) / torch.sqrt(v + eps)
def _scatter_add(tgt, idx, src, axis=0):
    return tgt.clone().index_add_(axis, idx, src)
def _segment_sum(src, seg, n):
    out = torch.zeros((n,) + src.shape[1:], dtype=src.dtype)
    return out.index_add_(0, seg, src)
def _pad(x, pw):
    flat = tuple(v for pair in reversed(pw) for v in pair)
    return torch.nn.functional.pad(x, flat)

kernel_name = 'sequential_preLN__mha_block__swiglu_ffn__prompt'

def setup_inputs():

    _w = (lambda a: (lambda t: t.to(torch.bfloat16) if t.is_floating_point() else t)(torch.as_tensor(a)))
    def _A_setup():
        B, S, D, H = 1, 2048, 1024, 32
        return {
            "x": _w((lambda *s: torch.randn(*s, dtype=torch.bfloat16) * 0.05)(B, S, D)),
            "wqkv": _w((lambda *s: torch.randn(*s, dtype=torch.bfloat16) * 0.05)(D, 3 * D)),
            "wo": _w((lambda *s: torch.randn(*s, dtype=torch.bfloat16) * 0.05)(D, D)),
        }
    _A_in = _A_setup()

    def _B_setup():
        B, S, D, F = 1, 2048, 1024, 3584
        return {
            "x": _w((lambda *s: torch.randn(*s, dtype=torch.bfloat16) * 0.05)(B, S, D)),
            "w_gate": _w((lambda *s: torch.randn(*s, dtype=torch.bfloat16) * 0.05)(D, F)),
            "w_up": _w((lambda *s: torch.randn(*s, dtype=torch.bfloat16) * 0.05)(D, F)),
            "w_down": _w((lambda *s: torch.randn(*s, dtype=torch.bfloat16) * 0.05)(F, D)),
        }
    _B_in = _B_setup()

    return {
        "A_x": _A_in["x"],
        "A_wqkv": _A_in["wqkv"],
        "A_wo": _A_in["wo"],
        "B_x": _B_in["x"],
        "B_w_gate": _B_in["w_gate"],
        "B_w_up": _B_in["w_up"],
        "B_w_down": _B_in["w_down"],
    }

def reference(A_x, A_wqkv, A_wo, B_x, B_w_gate, B_w_up, B_w_down):
    def _A_ref(x, wqkv, wo):
        B, S, D = x.shape
        H = 32
        Dh = D // H
        qkv = (lambda x, *d: x.permute(*d))((x @ wqkv).reshape(B, S, 3, H, Dh), 2, 0, 3, 1, 4)
        q, k, v = qkv[0], qkv[1], qkv[2]
        scores = torch.einsum("bhqd,bhkd->bhqk", q, k) * (Dh ** -0.5)
        p = _softmax(scores, axis=-1)
        o = torch.einsum("bhqk,bhkd->bhqd", p, v)
        return (lambda x, *d: x.permute(*d))(o, 0, 2, 1, 3).reshape(B, S, D) @ wo

    def _B_ref(x, w_gate, w_up, w_down):
        g = _silu(x @ w_gate)
        u = x @ w_up
        return (g * u) @ w_down

    x = A_x
    h = x + _A_ref(_layernorm(x, axis=-1), A_wqkv, A_wo)
    h2 = h + _B_ref(_layernorm(h, axis=-1), B_w_gate, B_w_up, B_w_down)
    return h2
```

```python
HEADER_COMMENT = """; Kernarg layout for this problem (80 bytes, ptrs only, base s[0:1]):
"""

class Kern:
    def __init__(self, name, grid, block, lds, vgpr, agpr=0, sgpr=96):
        self.name, self.grid, self.block, self.lds = name, grid, block, lds
        self.vgpr, self.agpr, self.sgpr = vgpr, agpr, sgpr
        self.lines = []
        self.nlabel = 0
        self.hazard = True
    def __call__(self, s):
        for l in s.split("\n"):
            l = l.strip()
            if l:
                self.lines.append(("" if l.endswith(":") else "    ") + l)
    def c(self, s):
        self.lines.append("    ; " + s)
    def label(self, base="L"):
        self.nlabel += 1
        return f"{self.name[:-7]}_{base}{self.nlabel}"
    def launch_line(self):
        g, b = self.grid, self.block
        return f"; @launch kernel={self.name} grid=({g[0]},{g[1]},{g[2]}) block=({b[0]},{b[1]},{b[2]}) lds={self.lds}"
    def text(self):
        import hz
        lines, added = hz.fix(self.lines, self.name) if self.hazard else (self.lines, 0)
        self.nops_added = added
        return (f".globl {self.name}\n.p2align 8\n.type {self.name},@function\n{self.name}:\n"
                + "\n".join(lines) + "\n")
    def desc(self):
        acc = (self.vgpr + 3) // 4 * 4
        nfv = acc + self.agpr if self.agpr else self.vgpr
        assert nfv <= 512 and acc <= 256
        return (f".p2align 6\n.amdhsa_kernel {self.name}\n"
                f"  .amdhsa_next_free_vgpr {nfv}\n"
                f"  .amdhsa_next_free_sgpr {self.sgpr}\n"
                f"  .amdhsa_accum_offset {acc}\n"
                f"  .amdhsa_group_segment_fixed_size 0\n"
                f"  .amdhsa_kernarg_size 80\n"
                f"  .amdhsa_user_sgpr_count 2\n"
                f"  .amdhsa_user_sgpr_kernarg_segment_ptr 1\n"
                f"  .amdhsa_system_sgpr_workgroup_id_x 1\n"
                f".end_amdhsa_kernel\n")

def emit(kernels, launches=None):
    launches = launches or kernels
    s = HEADER_COMMENT
    for k in launches:
        s += k.launch_line() + "\n"
    s += '.amdgcn_target "amdgcn-amd-amdhsa--gfx950"\n.text\n'
    for k in kernels:
        s += k.text()
    s += '.section .rodata,"a"\n'
    for k in kernels:
        s += k.desc()
    return s
```

```python
import re

def _regs(tok):
    tok = tok.strip()
    neg = tok.lstrip("-").strip("|")
    m = re.fullmatch(r"([vsa])(\d+)", neg)
    if m: return m.group(1), {int(m.group(2))}
    m = re.fullmatch(r"([vsa])\[(\d+):(\d+)\]", neg)
    if m: return m.group(1), set(range(int(m.group(2)), int(m.group(3)) + 1))
    if neg == "vcc": return "s", {106, 107}
    if neg == "vcc_lo": return "s", {106}
    if neg == "vcc_hi": return "s", {107}
    if neg == "exec": return "s", {126, 127}
    if neg == "exec_lo": return "s", {126}
    if neg == "exec_hi": return "s", {127}
    if neg == "m0": return "s", {124}
    return None, set()

TRANS = ("v_exp_f32", "v_log_f32", "v_rcp_f32", "v_rsq_f32", "v_sqrt_f32", "v_sin_f32", "v_cos_f32")

class Ins:
    def __init__(self, text):
        self.text = text
        t = text.split(";")[0].strip()
        self.label = t[:-1] if t.endswith(":") else None
        self.directive = t.startswith(".") or not t
        self.mn = "" if (self.label or self.directive) else t.split()[0]
        rest = t[len(self.mn):].strip() if self.mn else ""
        ops, depth, cur = [], 0, ""
        for ch in rest:
            if ch == "[": depth += 1
            if ch == "]": depth -= 1
            if ch == "," and depth == 0:
                ops.append(cur.strip()); cur = ""
            else: cur += ch
        if cur.strip(): ops.append(cur.strip())
        self.mods = ""
        if ops:
            parts = ops[-1].split(None, 1)
            ops[-1] = parts[0]
            self.mods = parts[1] if len(parts) > 1 else ""
        self.ops = ops
        mn = self.mn
        self.vw, self.vr, self.sw, self.sr = set(), set(), set(), set()
        self.kind = None
        self.passes = 0
        self.srcc = set(); self.srcab = set()
        self.states = 1
        def rd(tok):
            k, r = _regs(tok)
            if k == "v": self.vr |= r
            elif k == "a": self.vr |= {x + 256 for x in r}
            elif k == "s": self.sr |= r
        def wr(tok):
            k, r = _regs(tok)
            if k == "v": self.vw |= r
            elif k == "a": self.vw |= {x + 256 for x in r}
            elif k == "s": self.sw |= r
        def vset(tok):
            k, r = _regs(tok)
            return r if k == "v" else ({x + 256 for x in r} if k == "a" else set())
        if not mn:
            self.states = 0
        elif mn.startswith("v_mfma"):
            self.kind = "mfma"
            self.passes = 8 if "32x32x16" in mn else 4
            assert "32x32x16" in mn or "16x16x32" in mn, mn
            wr(ops[0]); rd(ops[1]); rd(ops[2]); rd(ops[3])
            self.srcab = vset(ops[1]) | vset(ops[2]); self.srcc = vset(ops[3])
        elif mn.startswith("v_"):
            self.kind = "valu"
            self.trans = any(mn.startswith(x) for x in TRANS)
            self.dpp = ("row_" in self.mods or "quad_perm" in self.mods or "_dpp" in mn or "wave_" in self.mods)
            self.permlane = mn.startswith("v_permlane")
            self.readlane = mn.startswith("v_readfirstlane") or mn.startswith("v_readlane")
            if mn == "v_nop": pass
            elif self.permlane and "swap" in mn:
                wr(ops[0]); wr(ops[1]); rd(ops[0]); rd(ops[1])
            elif mn.startswith("v_cmpx"):
                self.sw |= {126, 127}
                for o in ops: rd(o)
            elif mn.startswith("v_cmp"):
                wr(ops[0])
                for o in ops[1:]: rd(o)
            elif "_co_" in mn:
                wr(ops[0]); wr(ops[1])
                for o in ops[2:]: rd(o)
            else:
                wr(ops[0])
                for o in ops[1:]: rd(o)
                if mn.startswith(("v_fmac", "v_mac", "v_dot2c", "v_pk_fmac", "v_writelane")) or self.dpp: rd(ops[0])
                if mn.startswith("v_cndmask") and len(ops) == 3: self.sr |= {106, 107}
        elif mn.startswith("ds_"):
            self.kind = "ds"
            if mn.startswith(("ds_read", "ds_bpermute", "ds_permute", "ds_swizzle")):
                wr(ops[0])
                for o in ops[1:]: rd(o)
            else:
                for o in ops: rd(o)
        elif mn.startswith("buffer_") or mn.startswith("global_"):
            self.kind = "vmem"
            self.lds = bool(re.search(r"\blds\b", self.mods)) or "_lds_" in mn
            self.wide_store = False
            if "load" in mn and not self.lds:
                wr(ops[0])
                for o in ops[1:]: rd(o)
            else:
                for o in ops: rd(o)
                if self.lds: self.sr |= {124}
                if "store" in mn and ("x3" in mn or "x4" in mn):
                    self.wide_store = True
                    self.sdata = vset(ops[0] if mn.startswith("buffer_") else ops[1])
            if "atomic" in mn and ("sc0" in self.mods or "glc" in self.mods): wr(ops[0])
        elif mn.startswith("s_"):
            self.kind = "salu"
            if mn == "s_nop": self.states = int(ops[0], 0) + 1
            elif mn.startswith(("s_cmp", "s_cbranch", "s_branch", "s_waitcnt", "s_barrier", "s_endpgm", "s_setprio", "s_sleep", "s_bitcmp")):
                for o in ops: rd(o)
            else:
                if ops: wr(ops[0])
                for o in ops[1:]: rd(o)
                if "saveexec" in mn: self.sw |= {126, 127}
        else:
            raise ValueError("unknown instr: " + text)
        self.branch = ops[0] if mn.startswith(("s_cbranch", "s_branch")) else None

def need(p, c):
    n = 0
    if p.kind == "mfma":
        big = p.passes == 8
        d = p.vw
        if c.kind == "mfma":
            if d & c.srcab: n = max(n, 12 if big else 8)
            if d & c.srcc:
                if not (c.srcc == d and c.passes == p.passes): n = max(n, 10 if big else 6)
            elif d & c.vw and not (c.vw == d and c.passes == p.passes):
                n = max(n, 10 if big else 6)
        elif c.kind in ("valu", "ds", "vmem"):
            if d & (c.vr | c.vw): n = max(n, 12 if big else 8)
        if c.kind == "valu" and (p.srcc & c.vw): n = max(n, 7 if big else 3)
        if c.kind in ("ds", "vmem") and (p.srcc & c.vw): n = max(n, 7 if big else 3)
    elif p.kind == "valu":
        if c.kind == "mfma":
            if p.vw & c.vr: n = max(n, 2)
            if p.sw & {126, 127}: n = max(n, 4)
        if c.kind == "valu":
            if p.trans and not c.trans and (p.vw & (c.vr | c.vw)): n = max(n, 1)
            if p.trans and c.trans and (p.vw & c.vr): n = max(n, 1)
            if (c.dpp or c.permlane) and (p.vw & c.vr): n = max(n, 2)
            if c.readlane and (p.vw & c.vr): n = max(n, 1)
            if p.sw & c.sr: n = max(n, 4 if c.readlane or c.mn.startswith("v_writelane") else 2)
            if (p.sw & {126, 127}) and c.dpp: n = max(n, 5)
            if (p.sw & {126, 127}) and (c.readlane or c.permlane): n = max(n, 4)
            if ("op_sel" in p.mods or "sel:" in p.mods) and not p.mn.startswith("v_pk") and (p.vw & (c.vr | c.vw)): n = max(n, 1)
        if c.kind == "vmem" and (p.sw & c.sr): n = max(n, 5)
        if c.kind == "salu" and (p.sw & c.sr): n = max(n, 1)
        if p.trans and c.kind in ("ds", "vmem") and (p.vw & c.vr): n = max(n, 1)
    elif p.kind == "salu":
        if 124 in p.sw and c.kind == "vmem" and c.lds: n = max(n, 1)
    elif p.kind == "vmem":
        if p.wide_store and (p.sdata & c.vw): n = max(n, 2 if c.kind in ("valu", "mfma") else 1)
    return n

WIN = 24

def _deficit(window, c):
    dist = 0; miss = 0
    for p in reversed(window):
        if p.kind:
            n = need(p, c)
            if n > dist: miss = max(miss, n - dist)
        dist += p.states
        if dist >= 20: break
    return miss

def fix(lines, name=""):
    ins = [Ins(l) for l in lines]
    out = []
    added = 0
    for c in ins:
        if c.kind:
            miss = _deficit(out[-WIN:], c)
            if miss:
                out.append(Ins(f"    s_nop {miss-1}"))
                added += 1
        out.append(c)
        if c.mn in ("s_branch", "s_endpgm"):
            out.append(Ins("    ; ---"))
            out[-1].states = 100
    labels = {x.label: i for i, x in enumerate(out) if x.label}
    for i, b in enumerate(out):
        if b.branch:
            t = labels[b.branch]
            win = out[max(0, i - WIN):i + 1]
            for c in out[t:t + WIN]:
                if c.kind:
                    miss = _deficit(win, c)
                    if miss:
                        raise RuntimeError(f"{name}: hazard across branch '{b.text.strip()}' -> '{c.text.strip()}' missing {miss}")
                win.append(c)
                if c.mn in ("s_branch", "s_endpgm"): break
    return [x.text for x in out if x.text.strip() != "; ---"], added
```

```python
import sys, math
from asmlib import *

WS_XN, WS_Q, WS_K, WS_V = 0x0000000, 0x0400000, 0x0800000, 0x0C00000
WS_O, WS_H, WS_ACT = 0x1000000, 0x1400000, 0x1800000
WS_STAT, WS_CSUM = 0x2800000, 0x2900000
ARG = dict(x=0, wqkv=8, wo=16, wg=32, wu=40, wd=48, out=56, dbg=64, ws=72)
MB = 1 << 20

class Alloc:
    def __init__(self, start=1): self.n = start
    def __call__(self, cnt=1, align=1):
        self.n = (self.n + align - 1) // align * align
        r = self.n; self.n += cnt
        return r

def vr(b, n): return f"v[{b}:{b+n-1}]" if n > 1 else f"v{b}"
def sr(b, n): return f"s[{b}:{b+n-1}]" if n > 1 else f"s{b}"

def load_ptrs(k, names):
    for a, s in names:
        k(f"s_load_dwordx2 s[{s}:{s+1}], s[0:1], {ARG[a]}")

def srd(k, d, ptr, off, size, soff=None):
    if off:
        k(f"s_add_u32 s{d}, s{ptr}, {hex(off)}")
        k(f"s_addc_u32 s{d+1}, s{ptr+1}, 0")
    else:
        k(f"s_mov_b32 s{d}, s{ptr}")
        k(f"s_mov_b32 s{d+1}, s{ptr+1}")
    if soff is not None:
        k(f"s_add_u32 s{d}, s{d}, s{soff}")
        k(f"s_addc_u32 s{d+1}, s{d+1}, 0")
    k(f"s_mov_b32 s{d+2}, {hex(size)}")
    k(f"s_mov_b32 s{d+3}, 0x00020000")

def head(k, nwg, ptrs):
    k(f"s_cmp_ge_u32 s2, {nwg}")
    k(f"s_cbranch_scc1 {k.name}_end")
    load_ptrs(k, ptrs)
    k("v_lshrrev_b32 v1, 6, v0")
    k("v_and_b32 v0, 63, v0")
    k("v_readfirstlane_b32 s3, v1")
    k("s_and_b32 s90, s2, 7")
    k("s_lshr_b32 s91, s2, 3")

def tail(k):
    k(f"{k.name}_end:")
    k("s_endpgm")

def tile_map_4x8(k, mb, nb):
    k(f"""
    s_lshr_b32 s{mb}, s90, 1
    s_lshl_b32 s{mb}, s{mb}, 2
    s_lshr_b32 s92, s91, 3
    s_add_u32 s{mb}, s{mb}, s92
    s_and_b32 s{nb}, s90, 1
    s_lshl_b32 s{nb}, s{nb}, 3
    s_and_b32 s92, s91, 7
    s_add_u32 s{nb}, s{nb}, s92
    """)

def xlane_sum(k, v, t, bits):
    for b in bits:
        if b == 3:
            k(f"v_add_f32_dpp v{v}, v{v}, v{v} row_ror:8 row_mask:0xf bank_mask:0xf")
        else:
            k(f"v_mov_b32 v{t}, v{v}")
            k(f"v_permlane{16 if b == 4 else 32}_swap_b32 v{v}, v{t}")
            k(f"v_add_f32 v{v}, v{v}, v{t}")

def k_ln1(prefetch=True):
    k = Kern("ln1_kernel", (256, 1, 1), (256, 1, 1), 512, vgpr=72)
    head(k, 256, [("x", 4), ("ws", 6), ("wqkv", 24)])
    k("""
    s_lshl_b32 s30, s90, 8
    s_lshl_b32 s31, s91, 3
    s_add_u32 s30, s30, s31
    v_and_b32 v1, 7, v0
    v_lshrrev_b32 v2, 3, v0
    v_add_u32 v3, s30, v1
    v_lshlrev_b32 v3, 11, v3
    v_lshlrev_b32 v4, 4, v2
    v_add_u32 v3, v3, v4
    s_lshl_b32 s31, s3, 9
    v_add_u32 v3, s31, v3
    s_waitcnt lgkmcnt(0)
    """)
    srd(k, 8, 4, 0, 4 * MB)
    srd(k, 12, 6, WS_XN, 4 * MB)
    for i in range(4):
        k(f"buffer_load_dwordx4 v[{8+4*i}:{11+4*i}], v3, s[8:11], 0 offen offset:{128*i}")
    npf = 0
    if prefetch:
        srd(k, 16, 24, 0, 6 * MB)
        k("""
        s_lshl_b32 s32, s91, 5
        s_lshl_b32 s33, s3, 3
        s_add_u32 s32, s32, s33
        s_mul_i32 s32, s32, 6144
        s_and_b32 s33, s90, 1
        s_lshl_b32 s33, s33, 10
        s_add_u32 s32, s32, s33
        v_lshlrev_b32 v5, 4, v0
        """)
        for i in range(8):
            for sec in range(3):
                k(f"s_add_u32 s33, s32, {i*6144 + sec*2048}")
                k(f"buffer_load_dwordx4 v[64:67], v5, s[16:19], s33 offen")
                npf += 1
    k("""
    s_lshr_b32 s31, s30, 5
    s_lshl_b32 s31, s31, 16
    s_lshl_b32 s34, s3, 14
    s_add_u32 s31, s31, s34
    s_and_b32 s34, s30, 31
    s_lshl_b32 s34, s34, 4
    s_add_u32 s31, s31, s34
    v_lshrrev_b32 v4, 4, v0
    v_lshlrev_b32 v4, 10, v4
    v_and_b32 v5, 1, v2
    v_lshlrev_b32 v5, 9, v5
    v_add_u32 v4, v4, v5
    v_lshlrev_b32 v5, 4, v1
    v_add_u32 v4, v4, v5
    v_add_u32 v4, s31, v4
    s_movk_i32 s40, 0x1000
    s_movk_i32 s41, 0x2000
    s_movk_i32 s42, 0x3000
    s_lshl_b32 s35, s3, 5
    v_lshlrev_b32 v6, 2, v1
    v_add_u32 v7, s35, v6
    """)
    k(f"s_waitcnt vmcnt({npf})")
    F = 24
    for i in range(16):
        k(f"v_lshlrev_b32 v{F+2*i}, 16, v{8+i}")
        k(f"v_and_b32 v{F+2*i+1}, 0xffff0000, v{8+i}")
    def tree(dst, op):
        k(f"v_add_f32 v{dst}, v{F}, v{F+1}") if op == "sum" else None
    k(f"v_add_f32 v56, v{F}, v{F+1}")
    k(f"v_add_f32 v57, v{F+2}, v{F+3}")
    for i in range(4, 32, 2):
        k(f"v_add_f32 v56, v56, v{F+i}")
        k(f"v_add_f32 v57, v57, v{F+i+1}")
    k("v_add_f32 v56, v56, v57")
    xlane_sum(k, 56, 57, (3, 4, 5))
    k("""
    ds_write_b32 v7, v56
    s_waitcnt lgkmcnt(0)
    s_barrier
    ds_read_b32 v58, v6
    ds_read_b32 v59, v6 offset:32
    ds_read_b32 v60, v6 offset:64
    ds_read_b32 v61, v6 offset:96
    s_waitcnt lgkmcnt(0)
    v_add_f32 v58, v58, v59
    v_add_f32 v60, v60, v61
    v_add_f32 v58, v58, v60
    v_mul_f32 v58, 0x3a800000, v58
    """)
    for i in range(32):
        k(f"v_sub_f32 v{F+i}, v{F+i}, v58")
    k(f"v_mul_f32 v56, v{F}, v{F}")
    k(f"v_mul_f32 v57, v{F+1}, v{F+1}")
    for i in range(2, 32, 2):
        k(f"v_fmac_f32 v56, v{F+i}, v{F+i}")
        k(f"v_fmac_f32 v57, v{F+i+1}, v{F+i+1}")
    k("v_add_f32 v56, v56, v57")
    xlane_sum(k, 56, 57, (3, 4, 5))
    k("""
    ds_write_b32 v7, v56 offset:128
    s_waitcnt lgkmcnt(0)
    s_barrier
    ds_read_b32 v58, v6 offset:128
    ds_read_b32 v59, v6 offset:160
    ds_read_b32 v60, v6 offset:192
    ds_read_b32 v61, v6 offset:224
    s_waitcnt lgkmcnt(0)
    v_add_f32 v58, v58, v59
    v_add_f32 v60, v60, v61
    v_add_f32 v58, v58, v60
    v_mov_b32 v59, 0x3727c5ac
    v_fmac_f32 v59, 0x3a800000, v58
    v_rsq_f32 v59, v59
    """)
    for i in range(32):
        k(f"v_mul_f32 v{F+i}, v{F+i}, v59")
    for i in range(16):
        k(f"v_cvt_pk_bf16_f32 v{8+i}, v{F+2*i}, v{F+2*i+1}")
    for i, so in enumerate(("0", "s40", "s41", "s42")):
        k(f"buffer_store_dwordx4 v[{8+4*i}:{11+4*i}], v4, s[12:15], {so} offen")
    k("s_waitcnt vmcnt(0)")
    tail(k)
    return k

def csum_addr(k, wg_sgpr, wave="s3"):
    k(f"""
    s_and_b32 s50, {wg_sgpr}, 1
    s_lshr_b32 s52, {wg_sgpr}, 1
    s_and_b32 s52, s52, 15
    s_lshr_b32 s51, {wg_sgpr}, 5
    """)

def k_csum():
    k = Kern("csum_kernel", (224, 1, 1), (512, 1, 1), 16384, vgpr=64)
    head(k, 224, [("wg", 4), ("wu", 6), ("ws", 24)])
    csum_addr(k, "s2")
    k("""
    s_waitcnt lgkmcnt(0)
    s_cmp_eq_u32 s50, 0
    s_cselect_b32 s4, s4, s6
    s_cselect_b32 s5, s5, s7
    """)
    srd(k, 8, 4, 0, 7 * MB)
    srd(k, 12, 24, WS_CSUM, 2 * 3584 * 64)
    k("""
    s_lshl_b32 s53, s52, 6
    s_lshl_b32 s54, s3, 3
    s_add_u32 s53, s53, s54
    s_mul_i32 s53, s53, 7168
    s_lshl_b32 s54, s51, 10
    s_add_u32 s53, s53, s54
    v_lshlrev_b32 v1, 4, v0
    """)
    for i in range(8):
        k(f"s_add_u32 s54, s53, {i*7168}")
        k(f"buffer_load_dwordx4 v[{8+4*i}:{11+4*i}], v1, s[8:11], s54 offen")
    k("s_waitcnt vmcnt(0)")
    for e in range(4):
        k(f"v_lshlrev_b32 v{40+2*e}, 16, v{8+e}")
        k(f"v_and_b32 v{41+2*e}, 0xffff0000, v{8+e}")
    for i in range(1, 8):
        for e in range(4):
            k(f"v_lshlrev_b32 v48, 16, v{8+4*i+e}")
            k(f"v_and_b32 v49, 0xffff0000, v{8+4*i+e}")
            k(f"v_add_f32 v{40+2*e}, v{40+2*e}, v48")
            k(f"v_add_f32 v{41+2*e}, v{41+2*e}, v49")
    k("""
    s_lshl_b32 s54, s3, 11
    v_lshlrev_b32 v2, 5, v0
    v_add_u32 v2, s54, v2
    ds_write_b128 v2, v[40:43]
    ds_write_b128 v2, v[44:47] offset:16
    s_lshl_b32 s54, s3, 8
    v_lshlrev_b32 v3, 2, v0
    v_add_u32 v3, s54, v3
    s_waitcnt lgkmcnt(0)
    s_barrier
    """)
    for w in range(8):
        k(f"ds_read_b32 v{8+w}, v3 offset:{w*2048}")
    k("s_waitcnt lgkmcnt(0)")
    for w in range(1, 8):
        k(f"v_add_f32 v8, v8, v{8+w}")
    k("""
    s_mul_i32 s54, s50, 3584
    s_lshl_b32 s55, s51, 9
    s_add_u32 s54, s54, s55
    s_lshl_b32 s55, s3, 6
    s_add_u32 s54, s54, s55
    s_lshl_b32 s54, s54, 6
    s_lshl_b32 s55, s52, 2
    s_add_u32 s54, s54, s55
    v_lshlrev_b32 v4, 6, v0
    buffer_store_dword v8, v4, s[12:15], s54 offen
    s_waitcnt vmcnt(0)
    """)
    tail(k)
    return k

class Fifo:
    def __init__(self, k): self.k, self.q = k, []
    def issue(self, tag): self.q.append(tag)
    def need(self, tags):
        pos = [i for i, t in enumerate(self.q) if t in tags]
        if not pos: return
        younger = len(self.q) - 1 - max(pos)
        n = min(younger, 15)
        self.k(f"s_waitcnt lgkmcnt({n})")
        self.q = self.q[len(self.q) - n:] if n else []
    def drain(self):
        if self.q: self.k("s_waitcnt lgkmcnt(0)")
        self.q = []

class Gemm:
    def __init__(self, k, Mt, Nt, KK, G, S, nsteps, stage_bytes, acc, xf, wf, vXa, vWa, vXl, vWl,
                 xoff, woff, swap=lambda ni: False, dma=None, npieces=0, bpos=2, rpg=2, sRd=60, sCnt=61):
        self.__dict__.update(locals())
        self.fifo = Fifo(k)
        self.ng = KK // G
        assert KK % G == 0

    def reads(self, g, st):
        out = []
        for q in range(self.G):
            kk = g * self.G + q
            xs = [(f"ds_read_b128 {vr(self.xf[st] + 4*(q*self.Mt+mi), 4)}, v{self.vXa} offset:{self.xoff(mi, kk)}", ("x", st, q, mi)) for mi in range(self.Mt)]
            ws = []
            for ni in range(self.Nt):
                b = self.wf[st] + 4 * (q * self.Nt + ni)
                ws.append([(f"ds_read_b64_tr_b16 {vr(b + 2*j, 2)}, v{self.vWa} offset:{self.woff(ni, kk, j)}", ("w", st, q, ni)) for j in range(2)])
            out.append(xs[0]); out += ws[0]; out += xs[1:]
            for w in ws[1:]: out += w
        return out

    def mfmas(self, st):
        out = []
        for q in range(self.G):
            for ni in range(self.Nt):
                for mi in range(self.Mt):
                    a = vr(self.wf[st] + 4 * (q * self.Nt + ni), 4)
                    b = vr(self.xf[st] + 4 * (q * self.Mt + mi), 4)
                    if self.swap(ni): a, b = b, a
                    d = vr(self.acc(mi, ni), 16)
                    out.append((f"v_mfma_f32_32x32x16_bf16 {d}, {a}, {b}, {d}", {("x", st, q, mi), ("w", st, q, ni)}))
        return out

    def advance_slot(self):
        k = self.k
        return [f"s_add_u32 s{self.sRd}, s{self.sRd}, {self.stage_bytes}",
                f"s_cmp_ge_u32 s{self.sRd}, {self.S*self.stage_bytes}",
                f"s_cselect_b32 s{self.sRd}, 0, s{self.sRd}",
                f"v_add_u32 v{self.vXa}, s{self.sRd}, v{self.vXl}",
                f"v_add_u32 v{self.vWa}, s{self.sRd}, v{self.vWl}"]

    def group(self, st, fillers, barrier=None):
        k = self.k
        ms = self.mfmas(st)
        fl = list(fillers)
        for i, (m, tags) in enumerate(ms):
            if barrier is not None and i == min(self.bpos, len(ms) - 1):
                for a, t in fl:
                    k(a)
                    if t: self.fifo.issue(t)
                self.fifo.drain()
                if barrier[0] is not None: k(f"s_waitcnt vmcnt({barrier[0]})")
                k("s_barrier")
                fl = list(barrier[1])
            self.fifo.need(tags)
            k(m)
            n = 0
            while fl and n < self.rpg:
                a, t = fl.pop(0)
                k(a)
                if t: self.fifo.issue(t); n += 1
                elif a.startswith("buffer"): n += 2
        for a, t in fl:
            k(a)
            if t: self.fifo.issue(t)

    def step(self, par, dma, vm, last=False):
        for g in range(self.ng):
            st = (par + g) & 1
            if g < self.ng - 1:
                f = self.reads(g + 1, st ^ 1)
                if g == self.ng - 2 and not last: f = f + [(a, None) for a in self.advance_slot()]
                self.group(st, f)
            elif last:
                self.group(st, [])
            else:
                pre = [(a, None) for a in self.advance_slot()] if self.ng == 1 else []
                post = self.reads(0, st ^ 1)
                if dma:
                    d = [(a, None) for a in self.dma()]
                    post = post[:3] + d + post[3:] if False else post + d
                self.group(st, pre, barrier=(vm, post))
        return (par + self.ng) & 1

    def first_reads(self):
        for a, t in self.reads(0, 0):
            self.k(a); self.fifo.issue(t)

    def run(self):
        k, S, p = self.k, self.S, self.npieces
        self.first_reads()
        U = 2 if self.ng & 1 else 1
        n1 = (self.nsteps - S) if self.dma else (self.nsteps - 1)
        par = 0
        s = 0
        while (n1 - s) % U:
            par = self.step(par, True if self.dma else False, (S - 2) * p if self.dma else None); s += 1
        if n1 - s > 0:
            lab = k.label("loop")
            k(f"s_mov_b32 s{self.sCnt}, {(n1 - s)//U}")
            state = list(self.fifo.q)
            k(".p2align 4")
            k(f"{lab}:")
            for u in range(U):
                par = self.step(par, True if self.dma else False, (S - 2) * p if self.dma else None)
            assert [t for t in self.fifo.q] == state[len(state)-len(self.fifo.q):] or True
            k(f"s_sub_u32 s{self.sCnt}, s{self.sCnt}, 1")
            k(f"s_cmp_lg_u32 s{self.sCnt}, 0")
            k(f"s_cbranch_scc1 {lab}")
            self.fifo.q = list(state)
        for s in range(n1, self.nsteps):
            last = s == self.nsteps - 1
            vm = max(0, self.nsteps - 2 - s) * p if self.dma else None
            par = self.step(par, False, vm, last)

class Dma:
    def __init__(self, k, pieces, S, stage_bytes, steps, sWr=62):
        self.__dict__.update(locals())
        k(f"s_mov_b32 s64, {stage_bytes}")
        k(f"s_mov_b32 s65, {-(S-1)*stage_bytes}")
    def issue(self):
        out = []
        for (srd_, va, so, mb, mi) in self.pieces:
            out.append(f"s_add_u32 m0, s{mb}, {mi}")
            out.append("s_nop 0")
            out.append(f"buffer_load_dwordx4 v{va}, s[{srd_}:{srd_+3}], s{so} offen lds")
        for (so, inc) in self.steps:
            out.append(f"s_add_u32 s{so}, s{so}, {inc}")
        bases = sorted({p[3] for p in self.pieces})
        out.append(f"s_add_u32 s{self.sWr}, s{self.sWr}, 1")
        out.append(f"s_cmp_ge_u32 s{self.sWr}, {self.S}")
        out.append(f"s_cselect_b32 s{self.sWr}, 0, s{self.sWr}")
        out.append("s_cselect_b32 s63, s65, s64")
        for b in bases:
            out.append(f"s_add_u32 s{b}, s{b}, s63")
        return out

def loader_loop(k, dma, S, p, nsteps, sCnt=61):
    for s in range(S):
        for a in dma.issue(): k(a)
    k(f"s_waitcnt vmcnt({(S-1)*p})")
    k("s_barrier")
    n1 = nsteps - S
    lab = k.label("ld")
    k(f"s_mov_b32 s{sCnt}, {n1}")
    k(f"{lab}:")
    k(f"s_waitcnt vmcnt({(S-2)*p})")
    k("s_barrier")
    for a in dma.issue(): k(a)
    k(f"s_sub_u32 s{sCnt}, s{sCnt}, 1")
    k(f"s_cmp_lg_u32 s{sCnt}, 0")
    k(f"s_cbranch_scc1 {lab}")
    for s in range(n1, nsteps - 1):
        k(f"s_waitcnt vmcnt({max(0, nsteps - 2 - s) * p})")
        k("s_barrier")
    k("s_endpgm")

def w_lane_dma(k, dst, t1, t2, ldw):
    k(f"""
    v_lshrrev_b32 v{t1}, 5, v0
    v_lshlrev_b32 v{t1}, 2, v{t1}
    v_bfe_u32 v{t2}, v0, 2, 2
    v_add_u32 v{t1}, v{t1}, v{t2}
    s_mov_b32 s92, {ldw}
    v_mul_lo_u32 v{dst}, v{t1}, s92
    v_bfe_u32 v{t1}, v0, 4, 1
    v_lshlrev_b32 v{t1}, 6, v{t1}
    v_and_b32 v{t2}, 3, v0
    v_lshlrev_b32 v{t2}, 4, v{t2}
    v_add3_u32 v{dst}, v{dst}, v{t1}, v{t2}
    """)

def w_lane_read(k, dst, t1, t2, hi_stride, g_stride):
    k(f"""
    v_lshrrev_b32 v{t1}, 5, v0
    v_mul_u32_u24 v{dst}, {hi_stride}, v{t1}
    v_bfe_u32 v{t1}, v0, 2, 2
    v_lshlrev_b32 v{t1}, 6, v{t1}
    v_add_u32 v{dst}, v{dst}, v{t1}
    v_bfe_u32 v{t1}, v0, 4, 1
    v_mul_u32_u24 v{t1}, {g_stride}, v{t1}
    v_add_u32 v{dst}, v{dst}, v{t1}
    v_and_b32 v{t1}, 1, v0
    v_lshlrev_b32 v{t1}, 4, v{t1}
    v_bfe_u32 v{t2}, v0, 1, 1
    v_lshlrev_b32 v{t2}, 3, v{t2}
    v_add3_u32 v{dst}, v{dst}, v{t1}, v{t2}
    """)

def k_qkv(S=4, G=1, bpos=2, rpg=2):
    XB, WBY = 16384, 24576
    STG = XB + WBY
    k = Kern("qkv_kernel", (256, 1, 1), (512, 1, 1), S * STG, vgpr=256)
    head(k, 256, [("wqkv", 4), ("ws", 6)])
    tile_map_4x8(k, 30, 31)
    k("s_waitcnt lgkmcnt(0)")
    k("s_cmp_ge_u32 s3, 4")
    k(f"s_cbranch_scc0 qkv_comp")
    srd(k, 8, 6, WS_XN, 4 * MB)
    srd(k, 12, 4, 0, 6 * MB)
    k("s_sub_u32 s3, s3, 4")
    k("""
    s_lshl_b32 s32, s30, 2
    s_add_u32 s32, s32, s3
    s_lshl_b32 s32, s32, 16
    v_lshlrev_b32 v1, 4, v0
    v_add_u32 v1, s32, v1
    """)
    for i in range(4): k(f"v_add_u32 v{8+i}, {i*1024}, v1")
    w_lane_dma(k, 2, 3, 4, 6144)
    k("""
    s_mul_i32 s33, s3, 16*6144
    s_lshl_b32 s34, s31, 7
    s_add_u32 s33, s33, s34
    v_add_u32 v2, s33, v2
    """)
    for i in range(6): k(f"v_add_u32 v{12+i}, {(i//3)*8*6144 + (i%3)*2048}, v2")
    k(f"""
    s_mov_b32 s40, 0
    s_mov_b32 s41, 0
    s_lshl_b32 s42, s3, 12
    s_mul_i32 s43, s3, 6144
    s_add_u32 s43, s43, {XB}
    s_mov_b32 s62, 0
    """)
    pieces = [(8, 8+i, 40, 42, i*1024) for i in range(4)] + [(12, 12+i, 41, 43, i*1024) for i in range(6)]
    dma = Dma(k, pieces, S, STG, [(40, 4096), (41, 64*6144)])
    loader_loop(k, dma, S, 10, 16)
    k("qkv_comp:")
    al = Alloc(8)
    acc0 = al(96, 4)
    xf = [al(8*G, 4), al(8*G, 4)]
    wf = [al(12*G, 4), al(12*G, 4)]
    vXa, vWa, vXl, vWl, vO = al(), al(), al(), al(), al()
    k.vgpr = al.n
    srd(k, 8, 6, WS_Q, 12 * MB)
    k(f"""
    s_lshr_b32 s32, s3, 1
    s_and_b32 s33, s3, 1
    s_lshl_b32 s34, s32, 13
    v_lshlrev_b32 v{vO}, 4, v0
    v_add_u32 v{vXl}, s34, v{vO}
    """)
    w_lane_read(k, vWl, 2, 3, 3072, 32)
    k(f"""
    s_lshl_b32 s34, s33, 8
    s_add_u32 s34, s34, {XB}
    v_add_u32 v{vWl}, s34, v{vWl}
    v_mov_b32 v{vXa}, v{vXl}
    v_mov_b32 v{vWa}, v{vWl}
    s_mov_b32 s60, 0
    """)
    for i in range(96): k(f"v_mov_b32 v{acc0+i}, 0")
    k(f"""
    s_lshl_b32 s34, s31, 1
    s_add_u32 s34, s34, s33
    s_lshl_b32 s34, s34, 17
    s_lshl_b32 s35, s30, 2
    s_lshl_b32 s36, s32, 1
    s_add_u32 s35, s35, s36
    s_lshl_b32 s35, s35, 11
    s_add_u32 s34, s34, s35
    s_add_u32 s35, s34, {4*MB}
    s_add_u32 s36, s34, {8*MB}
    s_barrier
    """)
    g = Gemm(k, 2, 3, 4, G, S, 16, STG, lambda mi, ni: acc0 + 16*(mi*3+ni), xf, wf, vXa, vWa, vXl, vWl,
             xoff=lambda mi, kk: mi*4096 + kk*1024,
             woff=lambda ni, kk, j: kk*6144 + ni*1024 + j*512,
             swap=lambda ni: ni == 2, bpos=bpos, rpg=rpg)
    g.run()
    qs = math.log2(math.e) / math.sqrt(32.0)
    import struct
    k(f"s_mov_b32 s37, {hex(struct.unpack('<I', struct.pack('<f', qs))[0])}")
    for ni in (1, 2, 0):
        for mi in range(2):
            a = acc0 + 16*(mi*3+ni)
            if ni == 0:
                for r in range(16): k(f"v_mul_f32 v{a+r}, s37, v{a+r}")
            for r in range(8): k(f"v_cvt_pk_bf16_f32 v{a+r}, v{a+2*r}, v{a+2*r+1}")
            for j in range(2):
                k(f"buffer_store_dwordx4 {vr(a+4*j, 4)}, v{vO}, s[8:11], s{34+ni} offen offset:{mi*2048 + j*1024}")
    tail(k)
    return k

def k_n64(name, K, wname, xoff_ws, S=6, G=4, bpos=0, rpg=3):
    XB, WBY = 16384, 8192
    STG = XB + WBY
    nsteps = K // 64
    is_wo = name == "wo"
    k = Kern(name + "_kernel", (256, 1, 1), (512, 1, 1), S * STG, vgpr=256)
    head(k, 256, [(wname, 4), ("ws", 6), ("x" if is_wo else "out", 24)])
    tile_map_4x8(k, 30, 31)
    k("s_waitcnt lgkmcnt(0)")
    k("s_cmp_ge_u32 s3, 4")
    k(f"s_cbranch_scc0 {name}_comp")
    srd(k, 8, 6, xoff_ws, 2048 * K * 2)
    srd(k, 12, 4, 0, K * 2048)
    k("s_sub_u32 s3, s3, 4")
    k(f"""
    s_lshl_b32 s32, s30, 2
    s_add_u32 s32, s32, s3
    s_mul_i32 s32, s32, {K//16*1024}
    v_lshlrev_b32 v1, 4, v0
    v_add_u32 v1, s32, v1
    """)
    for i in range(4): k(f"v_add_u32 v{8+i}, {i*1024}, v1")
    w_lane_dma(k, 2, 3, 4, 2048)
    k("""
    s_lshl_b32 s33, s3, 15
    s_lshl_b32 s34, s31, 7
    s_add_u32 s33, s33, s34
    v_add_u32 v12, s33, v2
    v_add_u32 v13, 8*2048, v12
    """)
    k(f"""
    s_mov_b32 s40, 0
    s_mov_b32 s41, 0
    s_lshl_b32 s42, s3, 12
    s_lshl_b32 s43, s3, 11
    s_add_u32 s43, s43, {XB}
    s_mov_b32 s62, 0
    """)
    pieces = [(8, 8+i, 40, 42, i*1024) for i in range(4)] + [(12, 12+i, 41, 43, i*1024) for i in range(2)]
    dma = Dma(k, pieces, S, STG, [(40, 4096), (41, 64*2048)])
    loader_loop(k, dma, S, 6, nsteps)
    k(f"{name}_comp:")
    al = Alloc(8)
    acc0 = al(32, 4)
    xf = [al(4*G, 4), al(4*G, 4)]
    wf = [al(8*G, 4), al(8*G, 4)]
    res = al(16, 4)
    vXa, vWa, vXl, vWl, vT, vR = al(), al(), al(), al(), al(), al()
    k.vgpr = al.n
    k(f"""
    s_lshl_b32 s32, s30, 2
    s_add_u32 s32, s32, s3
    v_lshlrev_b32 v{vT}, 4, v0
    """)
    k(f"""
    v_and_b32 v2, 31, v0
    v_lshlrev_b32 v2, 11, v2
    v_lshrrev_b32 v3, 5, v0
    v_lshlrev_b32 v3, 4, v3
    v_add_u32 v{vR}, v2, v3
    s_lshl_b32 s33, s32, 16
    s_lshl_b32 s34, s31, 7
    s_add_u32 s33, s33, s34
    """)
    k(f"""
    s_lshl_b32 s34, s32, 6
    s_lshl_b32 s35, s31, 2
    s_add_u32 s34, s34, s35
    s_lshl_b32 s34, s34, 10
    """)
    srd(k, 8, 24, 0, 4 * MB)
    srd(k, 12, 6, WS_H, 4 * MB)
    for q in range(4):
        if is_wo: k(f"buffer_load_dwordx4 {vr(res+4*q, 4)}, v{vR}, s[8:11], s33 offen offset:{q*32}")
        else:     k(f"buffer_load_dwordx4 {vr(res+4*q, 4)}, v{vT}, s[12:15], s34 offen offset:{q*1024}")
    k(f"""
    s_lshl_b32 s35, s3, 12
    v_add_u32 v{vXl}, s35, v{vT}
    """)
    w_lane_read(k, vWl, 2, 3, 1024, 32)
    k(f"""
    v_add_u32 v{vWl}, {XB}, v{vWl}
    v_mov_b32 v{vXa}, v{vXl}
    v_mov_b32 v{vWa}, v{vWl}
    s_mov_b32 s60, 0
    s_waitcnt vmcnt(0)
    """)
    for i in range(16):
        k(f"v_lshlrev_b32 v{acc0+2*i}, 16, v{res+i}")
        k(f"v_and_b32 v{acc0+2*i+1}, 0xffff0000, v{res+i}")
    k("s_barrier")
    g = Gemm(k, 1, 2, 4, G, S, nsteps, STG, lambda mi, ni: acc0 + 16*ni, xf, wf, vXa, vWa, vXl, vWl,
             xoff=lambda mi, kk: kk*1024,
             woff=lambda ni, kk, j: kk*2048 + j*512 + ni*256, bpos=bpos, rpg=rpg)
    g.run()
    if is_wo:
        srd(k, 16, 6, WS_STAT, 2048 * 128)
        k(f"v_add_f32 v2, v{acc0}, v{acc0+1}")
        k(f"v_mul_f32 v3, v{acc0}, v{acc0}")
        k(f"v_fmac_f32 v3, v{acc0+1}, v{acc0+1}")
        for i in range(2, 32):
            k(f"v_add_f32 v2, v2, v{acc0+i}")
            k(f"v_fmac_f32 v3, v{acc0+i}, v{acc0+i}")
    for i in range(16):
        k(f"v_cvt_pk_bf16_f32 v{res+i}, v{acc0+2*i}, v{acc0+2*i+1}")
    for q in range(4):
        if is_wo: k(f"buffer_store_dwordx4 {vr(res+4*q, 4)}, v{vT}, s[12:15], s34 offen offset:{q*1024}")
        else:     k(f"buffer_store_dwordx4 {vr(res+4*q, 4)}, v{vR}, s[8:11], s33 offen offset:{q*32}")
    if is_wo:
        xlane_sum(k, 2, 4, (5,))
        xlane_sum(k, 3, 4, (5,))
        k(f"""
        v_lshlrev_b32 v5, 7, v0
        s_lshl_b32 s35, s32, 12
        s_lshl_b32 s36, s31, 3
        s_add_u32 s35, s35, s36
        s_mov_b32 exec_hi, 0
        buffer_store_dwordx2 v[2:3], v5, s[16:19], s35 offen
        """)
    tail(k)
    return k

def k_gu(S=5, bpos=2, rpg=2):
    XB = 16384
    GOFF = XB
    UOFF = XB + 7168 + 32
    STG = XB + 14336 + 256
    k = Kern("gu_kernel", (256, 1, 1), (512, 1, 1), S * STG, vgpr=256)
    head(k, 256, [("wg", 4), ("wu", 6), ("ws", 24)])
    k("""
    s_and_b32 s30, s90, 1
    s_lshl_b32 s30, s30, 2
    s_lshr_b32 s92, s91, 3
    s_add_u32 s30, s30, s92
    s_lshr_b32 s31, s90, 1
    s_lshl_b32 s31, s31, 3
    s_and_b32 s92, s91, 7
    s_add_u32 s31, s31, s92
    s_and_b32 s32, s3, 3
    s_mul_i32 s33, s31, 112
    s_and_b32 s34, s31, 1
    s_lshl_b32 s35, s34, 4
    s_add_u32 s35, s35, s33
    s_cmp_eq_u32 s34, 0
    s_cselect_b32 s36, 96, 0
    s_add_u32 s36, s36, s33
    s_waitcnt lgkmcnt(0)
    """)
    srd(k, 8, 24, WS_H, 4 * MB)
    srd(k, 16, 24, WS_STAT, 2048 * 128)
    srd(k, 20, 24, WS_CSUM, 2 * 3584 * 64)
    al = Alloc(8)
    acc0 = al(128, 4)
    xf = [al(8, 4), al(8, 4)]
    wf = [al(16, 4), al(16, 4)]
    vXa, vWa, vXl, vWl, vT = al(), al(), al(), al(), al()
    vD = al(5)
    vS = al(4)
    k.vgpr = al.n
    k(f"v_lshlrev_b32 v{vT}, 4, v0")
    k(f"""
    s_lshl_b32 s37, s30, 3
    s_lshl_b32 s38, s32, 1
    s_add_u32 s37, s37, s38
    s_lshl_b32 s38, s37, 12
    s_add_u32 s39, s38, 4096
    v_and_b32 v2, 31, v0
    v_lshlrev_b32 v2, 7, v2
    v_lshrrev_b32 v3, 5, v0
    v_lshlrev_b32 v3, 6, v3
    v_add_u32 v2, v2, v3
    """)
    for mi in range(2):
        for q in range(4):
            k(f"buffer_load_dwordx4 {vr(acc0 + 16*mi + 4*q, 4)}, v2, s[16:19], s{38+mi} offen offset:{q*16}")
    k(f"""
    v_and_b32 v3, 3, v0
    v_bfe_u32 v4, v0, 3, 1
    v_lshlrev_b32 v4, 2, v4
    v_bfe_u32 v5, v0, 2, 1
    v_lshlrev_b32 v5, 3, v5
    v_add3_u32 v3, v3, v4, v5
    v_bfe_u32 v4, v0, 4, 1
    v_mul_u32_u24 v4, 3584, v4
    v_add_u32 v3, v3, v4
    v_lshlrev_b32 v3, 6, v3
    v_lshrrev_b32 v4, 5, v0
    v_lshlrev_b32 v4, 5, v4
    v_add_u32 v3, v3, v4
    s_cmp_ge_u32 s3, 4
    s_cbranch_scc1 gu_b
    """)
    def path(isB):
        Nt = 3 if isB else 4
        t0 = 4 if isB else 0
        for ni in range(Nt):
            t = t0 + ni
            if t < 6: k(f"s_add_u32 s44, s35, {16*t}")
            else: k("s_mov_b32 s44, s36")
            k("s_lshl_b32 s44, s44, 6")
            for q in range(2):
                k(f"buffer_load_dwordx4 {vr(acc0 + 32 + 8*ni + 4*q, 4)}, v3, s[20:23], s44 offen offset:{q*16}")
        if not isB:
            for i in range(3):
                k(f"""
                s_mul_i32 s44, s3, 3
                s_add_u32 s44, s44, {i}
                s_lshr_b32 s45, s44, 1
                s_and_b32 s44, s44, 1
                s_lshl_b32 s46, s30, 3
                s_add_u32 s45, s45, s46
                s_lshl_b32 s45, s45, 16
                s_lshl_b32 s44, s44, 10
                s_add_u32 s45, s45, s44
                v_add_u32 v{vD+i}, s45, v{vT}
                """)
            k("s_mul_i32 s42, s3, 3072")
            pieces = [(8, vD+i, 40, 42, i*1024) for i in range(3)]
            steps = [(40, 2048)]
            npc = 3
        else:
            k(f"""
            s_add_u32 s44, s32, 12
            s_lshr_b32 s45, s44, 1
            s_and_b32 s44, s44, 1
            s_lshl_b32 s46, s30, 3
            s_add_u32 s45, s45, s46
            s_lshl_b32 s45, s45, 16
            s_lshl_b32 s44, s44, 10
            s_add_u32 s45, s45, s44
            v_add_u32 v{vD}, s45, v{vT}
            s_add_u32 s42, s32, 12
            s_lshl_b32 s42, s42, 10
            s_cmp_ge_u32 s32, 2
            s_cselect_b32 s4, s6, s4
            s_cselect_b32 s5, s7, s5
            s_cselect_b32 s43, {UOFF-GOFF}, 0
            s_add_u32 s43, s43, {GOFF}
            s_and_b32 s47, s32, 1
            s_lshl_b32 s44, s47, 12
            s_add_u32 s43, s43, s44
            s_lshl_b32 s46, s47, 8
            """)
            srd(k, 12, 4, 0, 7 * MB)
            for i in range(4):
                d = vD + 1 + i
                k(f"""
                v_add_u32 v4, s46, v0
                v_add_u32 v4, {64*i}, v4
                v_mul_u32_u24 v5, 586, v4
                v_lshrrev_b32 v5, 16, v5
                v_mul_u32_u24 v6, 112, v5
                v_sub_u32 v4, v4, v6
                v_lshlrev_b32 v5, 3, v5
                v_bfe_u32 v6, v4, 2, 2
                v_add_u32 v5, v5, v6
                v_lshrrev_b32 v6, 4, v4
                v_and_b32 v4, 3, v4
                v_cmp_le_u32 vcc, 3, v6
                v_cndmask_b32 v7, 0, 1, vcc
                v_mul_u32_u24 v1, 3, v7
                v_sub_u32 v1, v6, v1
                v_lshlrev_b32 v1, 2, v1
                v_add_u32 v1, v1, v4
                v_lshlrev_b32 v1, 3, v1
                v_add_u32 v1, s35, v1
                v_cmp_eq_u32 vcc, 6, v6
                v_lshrrev_b32 v6, 1, v4
                v_cndmask_b32 v7, v7, v6, vcc
                v_and_b32 v4, 1, v4
                v_lshlrev_b32 v4, 3, v4
                v_add_u32 v4, s36, v4
                v_cndmask_b32 v1, v1, v4, vcc
                v_lshlrev_b32 v7, 2, v7
                v_add_u32 v5, v5, v7
                v_mul_u32_u24 v5, 7168, v5
                v_lshlrev_b32 v1, 1, v1
                v_add_u32 v{d}, v5, v1
                """)
            k(f"""
            s_cmp_eq_u32 s47, 0
            s_cselect_b32 s48, 0, 0x40000000
            v_add_u32 v{vD+4}, s48, v{vD+4}
            s_cselect_b32 s49, s43, {S*STG - 3072}
            """)
            pieces = [(8, vD, 40, 42, 0)] + [(12, vD+1+i, 41, 43, i*1024) for i in range(3)] + [(12, vD+4, 41, 49, 3072)]
            steps = [(40, 2048), (41, 32*7168)]
            npc = 5
        k("s_mov_b32 s40, 0\ns_mov_b32 s41, 0\ns_mov_b32 s62, 0\ns_mov_b32 s60, 0")
        dma = Dma(k, pieces, S, STG, steps)
        if isB:
            iss0 = dma.issue
            def iss():
                o = iss0()
                o.append("s_cmp_eq_u32 s47, 0")
                o.append(f"s_cselect_b32 s49, s43, {S*STG - 3072}")
                return o
            dma.issue = iss
        for s in range(S):
            for a in dma.issue(): k(a)
        k(f"""
        s_lshl_b32 s44, s32, 12
        v_add_u32 v{vXl}, s44, v{vT}
        """)
        w_lane_read(k, vWl, 4, 5, 1792, UOFF - GOFF)
        k(f"""
        v_add_u32 v{vWl}, {GOFF}, v{vWl}
        v_mov_b32 v{vXa}, v{vXl}
        v_mov_b32 v{vWa}, v{vWl}
        s_mov_b32 s44, 0x07060302
        s_waitcnt vmcnt({S*npc + 2*Nt})
        """)
        for mi in range(2):
            a = acc0 + 16 * mi
            for q in range(1, 8):
                k(f"v_add_f32 v{a}, v{a}, v{a+2*q}")
                k(f"v_add_f32 v{a+1}, v{a+1}, v{a+2*q+1}")
            xlane_sum(k, a, 4, (5,))
            xlane_sum(k, a + 1, 4, (5,))
            b = xf[1] + 4 * mi
            k(f"""
            v_mul_f32 v{a}, 0xba800000, v{a}
            v_mul_f32 v{a+1}, 0x3a800000, v{a+1}
            v_fma_f32 v{a+1}, -v{a}, v{a}, v{a+1}
            v_max_f32 v{a+1}, 0, v{a+1}
            v_add_f32 v{vS+2*mi+1}, 0x3727c5ac, v{a+1}
            v_rsq_f32 v{vS+2*mi}, v{vS+2*mi+1}
            v_and_b32 v4, 0xffff0000, v{a}
            v_sub_f32 v5, v{a}, v4
            v_mul_f32 v{vS+2*mi}, 0xbfb8aa3b, v{vS+2*mi}
            v_and_b32 v6, 0xffff0000, v5
            v_sub_f32 v7, v5, v6
            v_perm_b32 v{b}, v6, v4, s44
            v_mov_b32 v{b+1}, v{b}
            v_perm_b32 v{b+2}, v4, v7, s44
            v_mov_b32 v{b+3}, 0
            """)
        k(f"s_waitcnt vmcnt({S*npc})")
        for ni in range(Nt):
            a = acc0 + 32 + 8 * ni
            for q in range(1, 8): k(f"v_add_f32 v{a}, v{a}, v{a+q}")
            xlane_sum(k, a, 4, (5,))
            b = wf[1] + 4 * ni
            k(f"""
            v_and_b32 v4, 0xffff0000, v{a}
            v_sub_f32 v5, v{a}, v4
            v_and_b32 v6, 0xffff0000, v5
            v_sub_f32 v7, v5, v6
            v_perm_b32 v{b}, v4, v4, s44
            v_perm_b32 v{b+1}, v6, v6, s44
            v_perm_b32 v{b+2}, v7, v4, s44
            v_mov_b32 v{b+3}, 0
            """)
        k("v_cmp_gt_u32 vcc, 32, v0")
        for ni in range(Nt):
            for q in range(3): k(f"v_cndmask_b32 v{wf[1]+4*ni+q}, 0, v{wf[1]+4*ni+q}, vcc")
        for ni in range(Nt):
            for mi in range(2):
                k(f"v_mfma_f32_32x32x16_bf16 {vr(acc0+16*(mi*Nt+ni), 16)}, {vr(wf[1]+4*ni, 4)}, {vr(xf[1]+4*mi, 4)}, 0")
        k(f"s_waitcnt vmcnt({(S-1)*npc})")
        k("s_barrier")
        def woff(ni, kk, j):
            t = t0 + ni
            return kk*3584 + ((3*j + (t >> 1))*256 + (t & 1)*32 if t < 6 else 6*256 + j*32)
        g = Gemm(k, 2, Nt, 2, 1, S, 32, STG, lambda mi, ni: acc0 + 16*(mi*Nt+ni), xf, wf, vXa, vWa, vXl, vWl,
                 xoff=lambda mi, kk: mi*2048 + kk*1024, woff=woff, dma=dma.issue, npieces=npc, bpos=bpos, rpg=rpg)
        g.run()
        srd(k, 8, 24, WS_ACT, 14 * MB)
        k("s_mul_i32 s37, s37, 224*1024")
        for ni in range(Nt):
            t = t0 + ni
            if t < 6: k(f"s_add_u32 s44, s35, {16*t}")
            else: k("s_mov_b32 s44, s36")
            k("s_lshl_b32 s44, s44, 6")
            k("s_add_u32 s44, s44, s37")
            k("s_add_u32 s45, s44, 224*1024")
            for mi in range(2):
                a = acc0 + 16*(mi*Nt+ni)
                T = xf[0]
                for r in range(8): k(f"v_mul_f32 v{T+r}, v{a+r}, v{vS+2*mi}")
                for r in range(8): k(f"v_exp_f32 v{T+r}, v{T+r}")
                for r in range(8): k(f"v_mul_f32 v{a+r}, v{a+r}, v{a+8+r}")
                for r in range(8): k(f"v_fma_f32 v{T+r}, v{T+r}, v{vS+2*mi+1}, v{vS+2*mi+1}")
                for r in range(8): k(f"v_rcp_f32 v{T+r}, v{T+r}")
                for r in range(8): k(f"v_mul_f32 v{a+r}, v{a+r}, v{T+r}")
                for r in range(4): k(f"v_cvt_pk_bf16_f32 v{a+8+r}, v{a+2*r}, v{a+2*r+1}")
                k(f"buffer_store_dwordx4 {vr(a+8, 4)}, v{vT}, s[8:11], s{44+mi} offen")
        k("s_endpgm")
    path(False)
    k("gu_b:")
    path(True)
    tail(k)
    k.lds = S * STG + 1024
    return k

def k_attn():
    S = 4
    FLAG = 65536
    k = Kern("attn_kernel", (256, 1, 1), (512, 1, 1), 65536 + 64, vgpr=128)
    head(k, 256, [("ws", 6)])
    al = Alloc(4)
    qf = al(8, 4); negm = al(16, 4); sa = [al(16, 4), al(16, 4)]; P = al(8, 4); O = al(16, 4); L = al(4, 4)
    sel = al(4, 4); kf = al(8, 4); vf = al(8, 4); vT = al(); vK = al()
    k.vgpr = al.n
    k(f"""
    s_lshl_b32 s30, s90, 2
    s_lshr_b32 s31, s91, 3
    s_add_u32 s30, s30, s31
    s_and_b32 s31, s91, 7
    s_lshl_b32 s32, s30, 17
    s_lshl_b32 s33, s31, 3
    s_add_u32 s33, s33, s3
    v_lshlrev_b32 v{vT}, 4, v0
    s_lshl_b32 s34, s3, 10
    v_add_u32 v{vK}, s34, v{vT}
    s_waitcnt lgkmcnt(0)
    """)
    srd(k, 8, 6, WS_Q, 131072, soff=32)
    srd(k, 12, 6, WS_K, 131072, soff=32)
    srd(k, 16, 6, WS_V, 131072, soff=32)
    srd(k, 20, 6, WS_O, 4 * MB)
    k(f"""
    s_lshl_b32 s35, s33, 11
    buffer_load_dwordx4 {vr(qf,4)}, v{vT}, s[8:11], s35 offen
    buffer_load_dwordx4 {vr(qf+4,4)}, v{vT}, s[8:11], s35 offen offset:1024
    v_bfe_u32 v1, v0, 2, 1
    v_bfe_u32 v2, v0, 4, 1
    v_cmp_eq_u32 vcc, v1, v2
    v_mov_b32 v1, 0x3f803f80
    v_cndmask_b32 v{sel}, 0, v1, vcc
    v_mov_b32 v{sel+1}, v{sel}
    v_mov_b32 v{sel+2}, v{sel}
    v_mov_b32 v{sel+3}, v{sel}
    v_mov_b32 v1, 0
    v_mov_b32 v2, {FLAG}
    ds_write_b32 v2, v1
    s_mov_b32 s36, 1
    """)
    k("attn_restart:")
    def dma(stage_sgpr_off, slot):
        return [f"s_add_u32 m0, s34, {slot*16384}", "s_nop 0",
                f"buffer_load_dwordx4 v{vK}, s[12:15], s37 offen lds",
                f"s_add_u32 m0, s34, {slot*16384 + 8192}", "s_nop 0",
                f"buffer_load_dwordx4 v{vK}, s[16:19], s37 offen lds",
                "s_add_u32 s37, s37, 8192"]
    k(f"""
    s_mov_b32 s38, 0
    s_mov_b32 s39, s36
    v_mov_b32 v{negm}, 0xff800000
    attn_scan:
    buffer_load_dwordx4 {vr(kf,4)}, v{vT}, s[12:15], s38 offen
    buffer_load_dwordx4 {vr(kf+4,4)}, v{vT}, s[12:15], s38 offen offset:1024
    """)
    k("s_cmp_lg_u32 s38, 0")
    k("s_cbranch_scc1 attn_scan2")
    k("s_mov_b32 s37, 0")
    for s in range(S - 1):
        for a in dma(37, s): k(a)
    k(f"s_waitcnt vmcnt({2*(S-1)})")
    k("s_branch attn_scan3")
    k("attn_scan2:")
    k("s_waitcnt vmcnt(0)")
    k("attn_scan3:")
    k(f"""
    v_mfma_f32_32x32x16_bf16 {vr(sa[0],16)}, {vr(kf,4)}, {vr(qf,4)}, 0
    v_mfma_f32_32x32x16_bf16 {vr(sa[0],16)}, {vr(kf+4,4)}, {vr(qf+4,4)}, {vr(sa[0],16)}
    s_add_u32 s38, s38, 2048
    s_sub_u32 s39, s39, 1
    """)
    for r in range(0, 16, 2):
        k(f"v_max3_f32 v{negm}, v{sa[0]+r}, v{sa[0]+r+1}, v{negm}")
    k(f"""
    s_cmp_lg_u32 s39, 0
    s_cbranch_scc1 attn_scan
    v_mov_b32 v1, v{negm}
    v_permlane32_swap_b32 v{negm}, v1
    v_max_f32 v1, v{negm}, v1
    """)
    for r in range(16): k(f"v_sub_f32 v{negm+r}, 0, v1")
    for r in range(16): k(f"v_mov_b32 v{O+r}, 0")
    for r in range(4): k(f"v_mov_b32 v{L+r}, 0")
    for r in range(4): k(f"v_mov_b32 v{P+4+r}, 0")
    for r in range(4): k(f"v_mov_b32 v{vf+4+r}, 0")
    k(f"""
    s_waitcnt vmcnt({2*(S-2)}) lgkmcnt(0)
    s_barrier
    ds_read_b128 {vr(kf,4)}, v{vT}
    ds_read_b128 {vr(kf+4,4)}, v{vT} offset:1024
    ds_read_b128 {vr(vf,4)}, v{vT} offset:8192
    s_waitcnt lgkmcnt(1)
    v_mfma_f32_32x32x16_bf16 {vr(sa[0],16)}, {vr(kf,4)}, {vr(qf,4)}, {vr(negm,16)}
    v_mfma_f32_32x32x16_bf16 {vr(sa[0],16)}, {vr(kf+4,4)}, {vr(qf+4,4)}, {vr(sa[0],16)}
    ds_read_b128 {vr(kf,4)}, v{vT} offset:2048
    ds_read_b128 {vr(kf+4,4)}, v{vT} offset:3072
    s_mov_b32 s39, 4
    s_waitcnt lgkmcnt(0)
    s_nop 7
    .p2align 4
    attn_loop:
    """)
    def koff(t, j): t %= 16; return (t >> 2)*16384 + (t & 3)*2048 + j*1024
    def voff(t, j): return koff(t, j) + 8192
    for t in range(16):
        c, n = sa[t & 1], sa[(t & 1) ^ 1]
        pre = []
        if t & 3 == 2:
            k(f"s_waitcnt vmcnt({2*(S-3)})")
            k("s_barrier")
            pre = dma(37, ((t >> 2) + S - 1) % S)
        E = lambda a, b: [k(f"v_exp_f32 v{c+r}, v{c+r}") for r in range(a, b)]
        C = lambda a, b: [k(f"v_cvt_pk_bf16_f32 v{P+r}, v{c+2*r}, v{c+2*r+1}") for r in range(a, b)]
        k("s_waitcnt lgkmcnt(3)")
        k(f"v_mfma_f32_32x32x16_bf16 {vr(n,16)}, {vr(kf,4)}, {vr(qf,4)}, {vr(negm,16)}")
        k(f"ds_read_b128 {vr(kf,4)}, v{vT} offset:{koff(t+2, 0)}")
        E(0, 4)
        for a in pre[:3]: k(a)
        k("s_waitcnt lgkmcnt(3)")
        k(f"v_mfma_f32_32x32x16_bf16 {vr(O,16)}, {vr(vf+4,4)}, {vr(P+4,4)}, {vr(O,16)}")
        k(f"ds_read_b128 {vr(vf+4,4)}, v{vT} offset:{voff(t, 1)}")
        E(4, 8)
        k(f"v_mfma_f32_16x16x32_bf16 {vr(L,4)}, {vr(sel,4)}, {vr(P+4,4)}, {vr(L,4)}")
        C(0, 4)
        for a in pre[3:]: k(a)
        k("s_waitcnt lgkmcnt(3)")
        k(f"v_mfma_f32_32x32x16_bf16 {vr(n,16)}, {vr(kf+4,4)}, {vr(qf+4,4)}, {vr(n,16)}")
        k(f"ds_read_b128 {vr(kf+4,4)}, v{vT} offset:{koff(t+2, 1)}")
        E(8, 12)
        k("s_waitcnt lgkmcnt(3)")
        k(f"v_mfma_f32_32x32x16_bf16 {vr(O,16)}, {vr(vf,4)}, {vr(P,4)}, {vr(O,16)}")
        k(f"ds_read_b128 {vr(vf,4)}, v{vT} offset:{voff(t+1, 0)}")
        E(12, 16)
        k(f"v_mfma_f32_16x16x32_bf16 {vr(L,4)}, {vr(sel,4)}, {vr(P,4)}, {vr(L,4)}")
        C(4, 8)
    k(f"""
    s_sub_u32 s39, s39, 1
    s_cmp_lg_u32 s39, 0
    s_cbranch_scc1 attn_loop
    s_waitcnt lgkmcnt(0)
    v_mfma_f32_32x32x16_bf16 {vr(O,16)}, {vr(vf+4,4)}, {vr(P+4,4)}, {vr(O,16)}
    v_mfma_f32_16x16x32_bf16 {vr(L,4)}, {vr(sel,4)}, {vr(P+4,4)}, {vr(L,4)}
    s_waitcnt vmcnt(0)
    s_nop 7
    v_rcp_f32 v1, v{L}
    """)
    for r in range(16): k(f"v_mul_f32 v{O+r}, v{O+r}, v1")
    k(f"""
    s_cmp_lg_u32 s36, 1
    s_cbranch_scc1 attn_store
    v_max3_f32 v2, |v{O}|, |v{O+1}|, |v{L}|
    """)
    k(f"v_mul_f32 v2, 0, v2")
    for r in range(2, 16): k(f"v_fma_f32 v2, 0, v{O+r}, v2")
    k(f"""
    v_fma_f32 v2, 0, v{O}, v2
    v_fma_f32 v2, 0, v{O+1}, v2
    v_add_f32 v2, v2, v{L}
    s_mov_b32 s40, 0x5d800000
    v_cmp_nlt_f32 vcc, v2, s40
    s_nop 1
    s_cbranch_vccz attn_vote
    v_mov_b32 v1, 1
    v_mov_b32 v2, {FLAG}
    ds_write_b32 v2, v1
    attn_vote:
    v_mov_b32 v2, {FLAG}
    s_waitcnt lgkmcnt(0)
    s_barrier
    ds_read_b32 v1, v2
    s_waitcnt lgkmcnt(0)
    v_readfirstlane_b32 s40, v1
    s_cmp_eq_u32 s40, 0
    s_cbranch_scc1 attn_store
    s_mov_b32 s36, 64
    s_branch attn_restart
    attn_store:
    s_lshl_b32 s35, s33, 6
    s_lshl_b32 s40, s30, 1
    s_add_u32 s35, s35, s40
    s_lshl_b32 s35, s35, 10
    """)
    for r in range(8): k(f"v_cvt_pk_bf16_f32 v{O+r}, v{O+2*r}, v{O+2*r+1}")
    k(f"buffer_store_dwordx4 {vr(O,4)}, v{vT}, s[20:23], s35 offen")
    k(f"buffer_store_dwordx4 {vr(O+4,4)}, v{vT}, s[20:23], s35 offen offset:1024")
    tail(k)
    return k

def build_all():
    return [k_ln1(), k_csum(), k_qkv(), k_attn(), k_n64("wo", 1024, "wo", WS_O), k_gu(), k_n64("down", 3584, "wd", WS_ACT)]

if __name__ == "__main__":
    out = sys.argv[1] if len(sys.argv) > 1 else "sequential_preLN__mha_block__swiglu_ffn__prompt.s"
    ks = build_all()
    txt = emit(ks)
    open(out, "w").write(txt)
    for k in ks: print(k.name, "vgpr", k.vgpr, "lds", k.lds, "lines", len(k.lines), "nops", k.nops_added)
```

```python
import sys, math
from asmlib import *

WS_XN, WS_Q, WS_K, WS_V = 0x0000000, 0x0400000, 0x0800000, 0x0C00000
WS_O, WS_H, WS_ACT = 0x1000000, 0x1400000, 0x1800000
WS_STAT, WS_CSUM = 0x2800000, 0x2900000
ARG = dict(x=0, wqkv=8, wo=16, wg=32, wu=40, wd=48, out=56, dbg=64, ws=72)
MB = 1 << 20

class Alloc:
    def __init__(self, start=1): self.n = start
    def __call__(self, cnt=1, align=1):
        self.n = (self.n + align - 1) // align * align
        r = self.n; self.n += cnt
        return r

def vr(b, n): return f"v[{b}:{b+n-1}]" if n > 1 else f"v{b}"
def sr(b, n): return f"s[{b}:{b+n-1}]" if n > 1 else f"s{b}"

def load_ptrs(k, names):
    for a, s in names:
        k(f"s_load_dwordx2 s[{s}:{s+1}], s[0:1], {ARG[a]}")

def srd(k, d, ptr, off, size, soff=None):
    if off:
        k(f"s_add_u32 s{d}, s{ptr}, {hex(off)}")
        k(f"s_addc_u32 s{d+1}, s{ptr+1}, 0")
    else:
        k(f"s_mov_b32 s{d}, s{ptr}")
        k(f"s_mov_b32 s{d+1}, s{ptr+1}")
    if soff is not None:
        k(f"s_add_u32 s{d}, s{d}, s{soff}")
        k(f"s_addc_u32 s{d+1}, s{d+1}, 0")
    k(f"s_mov_b32 s{d+2}, {hex(size)}")
    k(f"s_mov_b32 s{d+3}, 0x00020000")

def head(k, nwg, ptrs):
    k(f"s_cmp_ge_u32 s2, {nwg}")
    k(f"s_cbranch_scc1 {k.name}_end")
    k.nst = 0
    if STAMP:
        k("s_memrealtime s[94:95]")
        stamp(k)
    load_ptrs(k, ptrs)
    k("v_lshrrev_b32 v1, 6, v0")
    k("v_and_b32 v0, 63, v0")
    k("v_readfirstlane_b32 s3, v1")
    k("s_and_b32 s90, s2, 7")
    k("s_lshr_b32 s91, s2, 3")
    if STAMP:
        k("s_mov_b32 s93, s3")
        stamp(k)

import os
STAMP = int(os.environ.get("STAMP", "0"))
WS_STAMP = 0x3000000
KID = dict(ln1=0, csum=1, qkv=2, attn=3, wo=4, gu=5, down=6)
def stamp(k, i=None, real=False):
    if not STAMP: return
    if not real:
        i = k.nst; k.nst += 1
        assert i <= 8
    k(f"s_mem{'real' if real else ''}time s[{66+2*i}:{67+2*i}]")
    k("s_waitcnt lgkmcnt(0)")
def stamp_out(k, ws, n=None):
    if not STAMP: return
    stamp(k); stamp(k, 11, True)
    n = k.nst
    kid = KID[k.name[:-7]]
    k(f"s_add_u32 s84, s{ws}, {hex(WS_STAMP + kid * 0x100000)}")
    k(f"s_addc_u32 s85, s{ws+1}, 0")
    k("s_mov_b32 s86, 0x100000")
    k("s_mov_b32 s87, 0x00020000")
    k("s_lshl_b32 s92, s2, 3")
    k("s_add_u32 s92, s92, s93")
    k("s_lshl_b32 s92, s92, 6")
    k("s_mov_b64 exec, 1")
    k("v_mov_b32 v1, 0")
    for i in list(range(n)) + [9, 10, 11]:
        k({9: f"v_mov_b32 v2, {n}", 10: "v_mov_b32 v2, s94"}.get(i, f"v_mov_b32 v2, s{66+2*i}"))
        k(f"buffer_store_dword v2, v1, s[84:87], s92 offen offset:{4*i}")
    k("s_waitcnt vmcnt(0)")

def tail(k):
    k(f"{k.name}_end:")
    k("s_endpgm")

def tile_map_4x8(k, mb, nb):
    k(f"""
    s_lshr_b32 s{mb}, s90, 1
    s_lshl_b32 s{mb}, s{mb}, 2
    s_lshr_b32 s92, s91, 3
    s_add_u32 s{mb}, s{mb}, s92
    s_and_b32 s{nb}, s90, 1
    s_lshl_b32 s{nb}, s{nb}, 3
    s_and_b32 s92, s91, 7
    s_add_u32 s{nb}, s{nb}, s92
    """)

def xlane_sum(k, v, t, bits):
    for b in bits:
        if b == 3:
            k(f"v_add_f32_dpp v{v}, v{v}, v{v} row_ror:8 row_mask:0xf bank_mask:0xf")
        else:
            k(f"v_mov_b32 v{t}, v{v}")
            k(f"v_permlane{16 if b == 4 else 32}_swap_b32 v{v}, v{t}")
            k(f"v_add_f32 v{v}, v{v}, v{t}")

def k_ln1(prefetch=True):
    k = Kern("ln1_kernel", (256, 1, 1), (256, 1, 1), 512, vgpr=72)
    head(k, 256, [("x", 4), ("ws", 6), ("wqkv", 24)])
    k("""
    s_lshl_b32 s30, s90, 8
    s_lshl_b32 s31, s91, 3
    s_add_u32 s30, s30, s31
    v_and_b32 v1, 7, v0
    v_lshrrev_b32 v2, 3, v0
    v_add_u32 v3, s30, v1
    v_lshlrev_b32 v3, 11, v3
    v_lshlrev_b32 v4, 4, v2
    v_add_u32 v3, v3, v4
    s_lshl_b32 s31, s3, 9
    v_add_u32 v3, s31, v3
    s_waitcnt lgkmcnt(0)
    """)
    srd(k, 8, 4, 0, 4 * MB)
    srd(k, 12, 6, WS_XN, 4 * MB)
    for i in range(4):
        k(f"buffer_load_dwordx4 v[{8+4*i}:{11+4*i}], v3, s[8:11], 0 offen offset:{128*i}")
    npf = 0
    if prefetch:
        srd(k, 16, 24, 0, 6 * MB)
        k("""
        s_lshl_b32 s32, s91, 5
        s_lshl_b32 s33, s3, 3
        s_add_u32 s32, s32, s33
        s_mul_i32 s32, s32, 6144
        s_and_b32 s33, s90, 1
        s_lshl_b32 s33, s33, 10
        s_add_u32 s32, s32, s33
        v_lshlrev_b32 v5, 4, v0
        """)
        for i in range(8):
            for sec in range(3):
                k(f"s_add_u32 s33, s32, {i*6144 + sec*2048}")
                k(f"buffer_load_dwordx4 v[64:67], v5, s[16:19], s33 offen")
                npf += 1
    k("""
    s_lshr_b32 s31, s30, 5
    s_lshl_b32 s31, s31, 16
    s_lshl_b32 s34, s3, 14
    s_add_u32 s31, s31, s34
    s_and_b32 s34, s30, 31
    s_lshl_b32 s34, s34, 4
    s_add_u32 s31, s31, s34
    v_lshrrev_b32 v4, 4, v0
    v_lshlrev_b32 v4, 10, v4
    v_and_b32 v5, 1, v2
    v_lshlrev_b32 v5, 9, v5
    v_add_u32 v4, v4, v5
    v_lshlrev_b32 v5, 4, v1
    v_add_u32 v4, v4, v5
    v_add_u32 v4, s31, v4
    s_movk_i32 s40, 0x1000
    s_movk_i32 s41, 0x2000
    s_movk_i32 s42, 0x3000
    s_lshl_b32 s35, s3, 5
    v_lshlrev_b32 v6, 2, v1
    v_add_u32 v7, s35, v6
    """)
    k(f"s_waitcnt vmcnt({npf})")
    stamp(k)
    F = 24
    for i in range(16):
        k(f"v_lshlrev_b32 v{F+2*i}, 16, v{8+i}")
        k(f"v_and_b32 v{F+2*i+1}, 0xffff0000, v{8+i}")
    def tree(dst, op):
        k(f"v_add_f32 v{dst}, v{F}, v{F+1}") if op == "sum" else None
    k(f"v_add_f32 v56, v{F}, v{F+1}")
    k(f"v_add_f32 v57, v{F+2}, v{F+3}")
    for i in range(4, 32, 2):
        k(f"v_add_f32 v56, v56, v{F+i}")
        k(f"v_add_f32 v57, v57, v{F+i+1}")
    k("v_add_f32 v56, v56, v57")
    xlane_sum(k, 56, 57, (3, 4, 5))
    k("""
    ds_write_b32 v7, v56
    s_waitcnt lgkmcnt(0)
    s_barrier
    ds_read_b32 v58, v6
    ds_read_b32 v59, v6 offset:32
    ds_read_b32 v60, v6 offset:64
    ds_read_b32 v61, v6 offset:96
    s_waitcnt lgkmcnt(0)
    v_add_f32 v58, v58, v59
    v_add_f32 v60, v60, v61
    v_add_f32 v58, v58, v60
    v_mul_f32 v58, 0x3a800000, v58
    """)
    for i in range(32):
        k(f"v_sub_f32 v{F+i}, v{F+i}, v58")
    k(f"v_mul_f32 v56, v{F}, v{F}")
    k(f"v_mul_f32 v57, v{F+1}, v{F+1}")
    for i in range(2, 32, 2):
        k(f"v_fmac_f32 v56, v{F+i}, v{F+i}")
        k(f"v_fmac_f32 v57, v{F+i+1}, v{F+i+1}")
    k("v_add_f32 v56, v56, v57")
    xlane_sum(k, 56, 57, (3, 4, 5))
    k("""
    ds_write_b32 v7, v56 offset:128
    s_waitcnt lgkmcnt(0)
    s_barrier
    ds_read_b32 v58, v6 offset:128
    ds_read_b32 v59, v6 offset:160
    ds_read_b32 v60, v6 offset:192
    ds_read_b32 v61, v6 offset:224
    s_waitcnt lgkmcnt(0)
    v_add_f32 v58, v58, v59
    v_add_f32 v60, v60, v61
    v_add_f32 v58, v58, v60
    v_mov_b32 v59, 0x3727c5ac
    v_fmac_f32 v59, 0x3a800000, v58
    v_rsq_f32 v59, v59
    """)
    for i in range(32):
        k(f"v_mul_f32 v{F+i}, v{F+i}, v59")
    for i in range(16):
        k(f"v_cvt_pk_bf16_f32 v{8+i}, v{F+2*i}, v{F+2*i+1}")
    for i, so in enumerate(("0", "s40", "s41", "s42")):
        k(f"buffer_store_dwordx4 v[{8+4*i}:{11+4*i}], v4, s[12:15], {so} offen")
    stamp(k)
    k("s_waitcnt vmcnt(0)")
    stamp_out(k, 6, 3)
    tail(k)
    return k

def csum_addr(k, wg_sgpr, wave="s3"):
    k(f"""
    s_and_b32 s50, {wg_sgpr}, 1
    s_lshr_b32 s52, {wg_sgpr}, 1
    s_and_b32 s52, s52, 15
    s_lshr_b32 s51, {wg_sgpr}, 5
    """)

def k_csum():
    k = Kern("csum_kernel", (224, 1, 1), (512, 1, 1), 16384, vgpr=64)
    head(k, 224, [("wg", 4), ("wu", 6), ("ws", 24)])
    csum_addr(k, "s2")
    k("""
    s_waitcnt lgkmcnt(0)
    s_cmp_eq_u32 s50, 0
    s_cselect_b32 s4, s4, s6
    s_cselect_b32 s5, s5, s7
    """)
    srd(k, 8, 4, 0, 7 * MB)
    srd(k, 12, 24, WS_CSUM, 2 * 3584 * 64)
    k("""
    s_lshl_b32 s53, s52, 6
    s_lshl_b32 s54, s3, 3
    s_add_u32 s53, s53, s54
    s_mul_i32 s53, s53, 7168
    s_lshl_b32 s54, s51, 10
    s_add_u32 s53, s53, s54
    v_lshlrev_b32 v1, 4, v0
    """)
    for i in range(8):
        k(f"s_add_u32 s54, s53, {i*7168}")
        k(f"buffer_load_dwordx4 v[{8+4*i}:{11+4*i}], v1, s[8:11], s54 offen")
    k("s_waitcnt vmcnt(0)")
    for e in range(4):
        k(f"v_lshlrev_b32 v{40+2*e}, 16, v{8+e}")
        k(f"v_and_b32 v{41+2*e}, 0xffff0000, v{8+e}")
    for i in range(1, 8):
        for e in range(4):
            k(f"v_lshlrev_b32 v48, 16, v{8+4*i+e}")
            k(f"v_and_b32 v49, 0xffff0000, v{8+4*i+e}")
            k(f"v_add_f32 v{40+2*e}, v{40+2*e}, v48")
            k(f"v_add_f32 v{41+2*e}, v{41+2*e}, v49")
    k("""
    s_lshl_b32 s54, s3, 11
    v_lshlrev_b32 v2, 5, v0
    v_add_u32 v2, s54, v2
    ds_write_b128 v2, v[40:43]
    ds_write_b128 v2, v[44:47] offset:16
    s_lshl_b32 s54, s3, 8
    v_lshlrev_b32 v3, 2, v0
    v_add_u32 v3, s54, v3
    s_waitcnt lgkmcnt(0)
    s_barrier
    """)
    for w in range(8):
        k(f"ds_read_b32 v{8+w}, v3 offset:{w*2048}")
    k("s_waitcnt lgkmcnt(0)")
    for w in range(1, 8):
        k(f"v_add_f32 v8, v8, v{8+w}")
    k("""
    s_mul_i32 s54, s50, 3584
    s_lshl_b32 s55, s51, 9
    s_add_u32 s54, s54, s55
    s_lshl_b32 s55, s3, 6
    s_add_u32 s54, s54, s55
    s_lshl_b32 s54, s54, 6
    s_lshl_b32 s55, s52, 2
    s_add_u32 s54, s54, s55
    v_lshlrev_b32 v4, 6, v0
    buffer_store_dword v8, v4, s[12:15], s54 offen
    s_waitcnt vmcnt(0)
    """)
    tail(k)
    return k

class Fifo:
    def __init__(self, k): self.k, self.q = k, []
    def issue(self, tag): self.q.append(tag)
    def need(self, tags):
        pos = [i for i, t in enumerate(self.q) if t in tags]
        if not pos: return
        younger = len(self.q) - 1 - max(pos)
        n = min(younger, 15)
        self.k(f"s_waitcnt lgkmcnt({n})")
        self.q = self.q[len(self.q) - n:] if n else []
    def drain(self):
        if self.q: self.k("s_waitcnt lgkmcnt(0)")
        self.q = []

class Gemm:
    def __init__(self, k, Mt, Nt, KK, G, S, nsteps, stage_bytes, acc, xf, wf, vXa, vWa, vXl, vWl,
                 xoff, woff, swap=lambda ni: False, dma=None, npieces=0, bpos=2, rpg=2, sRd=60, sCnt=61):
        self.__dict__.update(locals())
        self.fifo = Fifo(k)
        self.ng = KK // G
        assert KK % G == 0

    def reads(self, g, st):
        out = []
        for q in range(self.G):
            kk = g * self.G + q
            xs = [(f"ds_read_b128 {vr(self.xf[st] + 4*(q*self.Mt+mi), 4)}, v{self.vXa} offset:{self.xoff(mi, kk)}", ("x", st, q, mi)) for mi in range(self.Mt)]
            ws = []
            for ni in range(self.Nt):
                b = self.wf[st] + 4 * (q * self.Nt + ni)
                ws.append([(f"ds_read_b64_tr_b16 {vr(b + 2*j, 2)}, v{self.vWa} offset:{self.woff(ni, kk, j)}", ("w", st, q, ni)) for j in range(2)])
            out.append(xs[0]); out += ws[0]; out += xs[1:]
            for w in ws[1:]: out += w
        return out

    def mfmas(self, st):
        out = []
        for q in range(self.G):
            for ni in range(self.Nt):
                for mi in range(self.Mt):
                    a = vr(self.wf[st] + 4 * (q * self.Nt + ni), 4)
                    b = vr(self.xf[st] + 4 * (q * self.Mt + mi), 4)
                    if self.swap(ni): a, b = b, a
                    d = vr(self.acc(mi, ni), 16)
                    if os.environ.get("MF16"):
                        for h in range(2):
                            d = vr(self.acc(mi, ni) + 8*((st+q)&1) + 4*h, 4)
                            out.append((f"v_mfma_f32_16x16x32_bf16 {d}, {a}, {b}, {d}", {("x", st, q, mi), ("w", st, q, ni)}))
                        continue
                    out.append((f"v_mfma_f32_32x32x16_bf16 {d}, {a}, {b}, {d}", {("x", st, q, mi), ("w", st, q, ni)}))
        return out

    def advance_slot(self):
        k = self.k
        return [f"s_add_u32 s{self.sRd}, s{self.sRd}, {self.stage_bytes}",
                f"s_cmp_ge_u32 s{self.sRd}, {self.S*self.stage_bytes}",
                f"s_cselect_b32 s{self.sRd}, 0, s{self.sRd}",
                f"v_add_u32 v{self.vXa}, s{self.sRd}, v{self.vXl}",
                f"v_add_u32 v{self.vWa}, s{self.sRd}, v{self.vWl}"]

    def group(self, st, fillers, barrier=None):
        k = self.k
        ms = self.mfmas(st)
        fl = list(fillers)
        for i, (m, tags) in enumerate(ms):
            if barrier is not None and i == min(self.bpos, len(ms) - 1):
                for a, t in fl:
                    k(a)
                    if t: self.fifo.issue(t)
                self.fifo.drain()
                if barrier[0] is not None: k(f"s_waitcnt vmcnt({barrier[0]})")
                k("s_barrier")
                fl = list(barrier[1])
            self.fifo.need(tags)
            k(m)
            n = 0
            while fl and n < self.rpg:
                a, t = fl.pop(0)
                k(a)
                if t: self.fifo.issue(t); n += 1
                elif a.startswith("buffer"): n += 2
        for a, t in fl:
            k(a)
            if t: self.fifo.issue(t)

    def step(self, par, dma, vm, last=False):
        for g in range(self.ng):
            st = (par + g) & 1
            if g < self.ng - 1:
                f = self.reads(g + 1, st ^ 1)
                if g == self.ng - 2 and not last: f = f + [(a, None) for a in self.advance_slot()]
                self.group(st, f)
            elif last:
                self.group(st, [])
            else:
                pre = [(a, None) for a in self.advance_slot()] if self.ng == 1 else []
                post = self.reads(0, st ^ 1)
                if dma:
                    d = [(a, None) for a in self.dma()]
                    post = post[:3] + d + post[3:] if False else post + d
                self.group(st, pre, barrier=(vm, post))
        return (par + self.ng) & 1

    def first_reads(self):
        for a, t in self.reads(0, 0):
            self.k(a); self.fifo.issue(t)

    def run(self):
        k, S, p = self.k, self.S, self.npieces
        stamp(k)
        self.first_reads()
        U = 2 if self.ng & 1 else 1
        n1 = (self.nsteps - S) if self.dma else (self.nsteps - 1)
        par = 0
        s = 0
        while (n1 - s) % U:
            par = self.step(par, True if self.dma else False, (S - 2) * p if self.dma else None); s += 1
        if n1 - s > 0:
            lab = k.label("loop")
            k(f"s_mov_b32 s{self.sCnt}, {(n1 - s)//U}")
            state = list(self.fifo.q)
            k(".p2align 4")
            k(f"{lab}:")
            for u in range(U):
                par = self.step(par, True if self.dma else False, (S - 2) * p if self.dma else None)
            assert [t for t in self.fifo.q] == state[len(state)-len(self.fifo.q):] or True
            k(f"s_sub_u32 s{self.sCnt}, s{self.sCnt}, 1")
            k(f"s_cmp_lg_u32 s{self.sCnt}, 0")
            k(f"s_cbranch_scc1 {lab}")
            self.fifo.q = list(state)
        for s in range(n1, self.nsteps):
            last = s == self.nsteps - 1
            vm = max(0, self.nsteps - 2 - s) * p if self.dma else None
            par = self.step(par, False, vm, last)
        stamp(k)

class Dma:
    def __init__(self, k, pieces, S, stage_bytes, steps, sWr=62):
        self.__dict__.update(locals())
        k(f"s_mov_b32 s64, {stage_bytes}")
        k(f"s_mov_b32 s65, {-(S-1)*stage_bytes}")
    def issue(self):
        out = []
        for (srd_, va, so, mb, mi) in self.pieces:
            out.append(f"s_add_u32 m0, s{mb}, {mi}")
            out.append("s_nop 0")
            out.append(f"buffer_load_dwordx4 v{va}, s[{srd_}:{srd_+3}], s{so} offen lds")
        for (so, inc) in self.steps:
            out.append(f"s_add_u32 s{so}, s{so}, {inc}")
        bases = sorted({p[3] for p in self.pieces})
        out.append(f"s_add_u32 s{self.sWr}, s{self.sWr}, 1")
        out.append(f"s_cmp_ge_u32 s{self.sWr}, {self.S}")
        out.append(f"s_cselect_b32 s{self.sWr}, 0, s{self.sWr}")
        out.append("s_cselect_b32 s63, s65, s64")
        for b in bases:
            out.append(f"s_add_u32 s{b}, s{b}, s63")
        return out

def loader_loop(k, dma, S, p, nsteps, sCnt=61):
    nst0 = k.nst
    stamp(k)
    for s in range(S):
        for a in dma.issue(): k(a)
    stamp(k)
    k(f"s_waitcnt vmcnt({(S-1)*p})")
    stamp(k)
    k("s_barrier")
    stamp(k)
    n1 = nsteps - S
    lab = k.label("ld")
    k(f"s_mov_b32 s{sCnt}, {n1}")
    k(f"{lab}:")
    k(f"s_waitcnt vmcnt({(S-2)*p})")
    k("s_barrier")
    for a in dma.issue(): k(a)
    k(f"s_sub_u32 s{sCnt}, s{sCnt}, 1")
    k(f"s_cmp_lg_u32 s{sCnt}, 0")
    k(f"s_cbranch_scc1 {lab}")
    for s in range(n1, nsteps - 1):
        k(f"s_waitcnt vmcnt({max(0, nsteps - 2 - s) * p})")
        k("s_barrier")
    stamp_out(k, 6)
    k("s_endpgm")
    k.nst = nst0

def w_lane_dma(k, dst, t1, t2, ldw):
    k(f"""
    v_lshrrev_b32 v{t1}, 5, v0
    v_lshlrev_b32 v{t1}, 2, v{t1}
    v_bfe_u32 v{t2}, v0, 2, 2
    v_add_u32 v{t1}, v{t1}, v{t2}
    s_mov_b32 s92, {ldw}
    v_mul_lo_u32 v{dst}, v{t1}, s92
    v_bfe_u32 v{t1}, v0, 4, 1
    v_lshlrev_b32 v{t1}, 6, v{t1}
    v_and_b32 v{t2}, 3, v0
    v_lshlrev_b32 v{t2}, 4, v{t2}
    v_add3_u32 v{dst}, v{dst}, v{t1}, v{t2}
    """)

def w_lane_read(k, dst, t1, t2, hi_stride, g_stride):
    k(f"""
    v_lshrrev_b32 v{t1}, 5, v0
    v_mul_u32_u24 v{dst}, {hi_stride}, v{t1}
    v_bfe_u32 v{t1}, v0, 2, 2
    v_lshlrev_b32 v{t1}, 6, v{t1}
    v_add_u32 v{dst}, v{dst}, v{t1}
    v_bfe_u32 v{t1}, v0, 4, 1
    v_mul_u32_u24 v{t1}, {g_stride}, v{t1}
    v_add_u32 v{dst}, v{dst}, v{t1}
    v_and_b32 v{t1}, 1, v0
    v_lshlrev_b32 v{t1}, 4, v{t1}
    v_bfe_u32 v{t2}, v0, 1, 1
    v_lshlrev_b32 v{t2}, 3, v{t2}
    v_add3_u32 v{dst}, v{dst}, v{t1}, v{t2}
    """)

def k_qkv(S=4, G=1, bpos=2, rpg=2):
    XB, WBY = 16384, 24576
    STG = XB + WBY
    k = Kern("qkv_kernel", (256, 1, 1), (512, 1, 1), S * STG, vgpr=256)
    head(k, 256, [("wqkv", 4), ("ws", 6)])
    tile_map_4x8(k, 30, 31)
    k("s_waitcnt lgkmcnt(0)")
    k("s_cmp_ge_u32 s3, 4")
    k(f"s_cbranch_scc0 qkv_comp")
    srd(k, 8, 6, WS_XN, 4 * MB)
    srd(k, 12, 4, 0, 6 * MB)
    k("s_sub_u32 s3, s3, 4")
    k("""
    s_lshl_b32 s32, s30, 2
    s_add_u32 s32, s32, s3
    s_lshl_b32 s32, s32, 16
    v_lshlrev_b32 v1, 4, v0
    v_add_u32 v1, s32, v1
    """)
    for i in range(4): k(f"v_add_u32 v{8+i}, {i*1024}, v1")
    w_lane_dma(k, 2, 3, 4, 6144)
    k("""
    s_mul_i32 s33, s3, 16*6144
    s_lshl_b32 s34, s31, 7
    s_add_u32 s33, s33, s34
    v_add_u32 v2, s33, v2
    """)
    for i in range(6): k(f"v_add_u32 v{12+i}, {(i//3)*8*6144 + (i%3)*2048}, v2")
    k(f"""
    s_mov_b32 s40, 0
    s_mov_b32 s41, 0
    s_lshl_b32 s42, s3, 12
    s_mul_i32 s43, s3, 6144
    s_add_u32 s43, s43, {XB}
    s_mov_b32 s62, 0
    """)
    pieces = [(8, 8+i, 40, 42, i*1024) for i in range(4)] + [(12, 12+i, 41, 43, i*1024) for i in range(6)]
    dma = Dma(k, pieces, S, STG, [(40, 4096), (41, 64*6144)])
    loader_loop(k, dma, S, 10, 16)
    k("qkv_comp:")
    al = Alloc(8)
    acc0 = al(96, 4)
    xf = [al(8*G, 4), al(8*G, 4)]
    wf = [al(12*G, 4), al(12*G, 4)]
    vXa, vWa, vXl, vWl, vO = al(), al(), al(), al(), al()
    k.vgpr = al.n
    srd(k, 8, 6, WS_Q, 12 * MB)
    k(f"""
    s_lshr_b32 s32, s3, 1
    s_and_b32 s33, s3, 1
    s_lshl_b32 s34, s32, 13
    v_lshlrev_b32 v{vO}, 4, v0
    v_add_u32 v{vXl}, s34, v{vO}
    """)
    w_lane_read(k, vWl, 2, 3, 3072, 32)
    k(f"""
    s_lshl_b32 s34, s33, 8
    s_add_u32 s34, s34, {XB}
    v_add_u32 v{vWl}, s34, v{vWl}
    v_mov_b32 v{vXa}, v{vXl}
    v_mov_b32 v{vWa}, v{vWl}
    s_mov_b32 s60, 0
    """)
    for i in range(96): k(f"v_mov_b32 v{acc0+i}, 0")
    k(f"""
    s_lshl_b32 s34, s31, 1
    s_add_u32 s34, s34, s33
    s_lshl_b32 s34, s34, 17
    s_lshl_b32 s35, s30, 2
    s_lshl_b32 s36, s32, 1
    s_add_u32 s35, s35, s36
    s_lshl_b32 s35, s35, 11
    s_add_u32 s34, s34, s35
    s_add_u32 s35, s34, {4*MB}
    s_add_u32 s36, s34, {8*MB}
    s_barrier
    """)
    g = Gemm(k, 2, 3, 4, G, S, 16, STG, lambda mi, ni: acc0 + 16*(mi*3+ni), xf, wf, vXa, vWa, vXl, vWl,
             xoff=lambda mi, kk: mi*4096 + kk*1024,
             woff=lambda ni, kk, j: kk*6144 + ni*1024 + j*512,
             swap=lambda ni: ni == 2, bpos=bpos, rpg=rpg)
    g.run()
    qs = math.log2(math.e) / math.sqrt(32.0)
    import struct
    k(f"s_mov_b32 s37, {hex(struct.unpack('<I', struct.pack('<f', qs))[0])}")
    for ni in (1, 2, 0):
        for mi in range(2):
            a = acc0 + 16*(mi*3+ni)
            if ni == 0:
                for r in range(16): k(f"v_mul_f32 v{a+r}, s37, v{a+r}")
            for r in range(8): k(f"v_cvt_pk_bf16_f32 v{a+r}, v{a+2*r}, v{a+2*r+1}")
            for j in range(2):
                k(f"buffer_store_dwordx4 {vr(a+4*j, 4)}, v{vO}, s[8:11], s{34+ni} offen offset:{mi*2048 + j*1024}")
    if STAMP: stamp(k); k("s_waitcnt vmcnt(0)"); stamp_out(k, 6, 4)
    tail(k)
    return k

def k_n64(name, K, wname, xoff_ws, S=6, G=4, bpos=0, rpg=3):
    XB, WBY = 16384, 8192
    STG = XB + WBY
    nsteps = K // 64
    is_wo = name == "wo"
    k = Kern(name + "_kernel", (256, 1, 1), (512, 1, 1), S * STG, vgpr=256)
    head(k, 256, [(wname, 4), ("ws", 6), ("x" if is_wo else "out", 24)])
    tile_map_4x8(k, 30, 31)
    k("s_waitcnt lgkmcnt(0)")
    k("s_cmp_ge_u32 s3, 4")
    k(f"s_cbranch_scc0 {name}_comp")
    srd(k, 8, 6, xoff_ws, 2048 * K * 2)
    srd(k, 12, 4, 0, K * 2048)
    k("s_sub_u32 s3, s3, 4")
    k(f"""
    s_lshl_b32 s32, s30, 2
    s_add_u32 s32, s32, s3
    s_mul_i32 s32, s32, {K//16*1024}
    v_lshlrev_b32 v1, 4, v0
    v_add_u32 v1, s32, v1
    """)
    for i in range(4): k(f"v_add_u32 v{8+i}, {i*1024}, v1")
    w_lane_dma(k, 2, 3, 4, 2048)
    k("""
    s_lshl_b32 s33, s3, 15
    s_lshl_b32 s34, s31, 7
    s_add_u32 s33, s33, s34
    v_add_u32 v12, s33, v2
    v_add_u32 v13, 8*2048, v12
    """)
    k(f"""
    s_mov_b32 s40, 0
    s_mov_b32 s41, 0
    s_lshl_b32 s42, s3, 12
    s_lshl_b32 s43, s3, 11
    s_add_u32 s43, s43, {XB}
    s_mov_b32 s62, 0
    """)
    pieces = [(8, 8+i, 40, 42, i*1024) for i in range(4)] + [(12, 12+i, 41, 43, i*1024) for i in range(2)]
    dma = Dma(k, pieces, S, STG, [(40, 4096), (41, 64*2048)])
    loader_loop(k, dma, S, 6, nsteps)
    k(f"{name}_comp:")
    al = Alloc(8)
    acc0 = al(32, 4)
    xf = [al(4*G, 4), al(4*G, 4)]
    wf = [al(8*G, 4), al(8*G, 4)]
    res = al(16, 4)
    vXa, vWa, vXl, vWl, vT, vR = al(), al(), al(), al(), al(), al()
    k.vgpr = al.n
    k(f"""
    s_lshl_b32 s32, s30, 2
    s_add_u32 s32, s32, s3
    v_lshlrev_b32 v{vT}, 4, v0
    """)
    k(f"""
    v_and_b32 v2, 31, v0
    v_lshlrev_b32 v2, 11, v2
    v_lshrrev_b32 v3, 5, v0
    v_lshlrev_b32 v3, 4, v3
    v_add_u32 v{vR}, v2, v3
    s_lshl_b32 s33, s32, 16
    s_lshl_b32 s34, s31, 7
    s_add_u32 s33, s33, s34
    """)
    k(f"""
    s_lshl_b32 s34, s32, 6
    s_lshl_b32 s35, s31, 2
    s_add_u32 s34, s34, s35
    s_lshl_b32 s34, s34, 10
    """)
    srd(k, 8, 24, 0, 4 * MB)
    srd(k, 12, 6, WS_H, 4 * MB)
    for q in range(4):
        if is_wo: k(f"buffer_load_dwordx4 {vr(res+4*q, 4)}, v{vR}, s[8:11], s33 offen offset:{q*32}")
        else:     k(f"buffer_load_dwordx4 {vr(res+4*q, 4)}, v{vT}, s[12:15], s34 offen offset:{q*1024}")
    k(f"""
    s_lshl_b32 s35, s3, 12
    v_add_u32 v{vXl}, s35, v{vT}
    """)
    w_lane_read(k, vWl, 2, 3, 1024, 32)
    k(f"""
    v_add_u32 v{vWl}, {XB}, v{vWl}
    v_mov_b32 v{vXa}, v{vXl}
    v_mov_b32 v{vWa}, v{vWl}
    s_mov_b32 s60, 0
    s_waitcnt vmcnt(0)
    """)
    for i in range(16):
        k(f"v_lshlrev_b32 v{acc0+2*i}, 16, v{res+i}")
        k(f"v_and_b32 v{acc0+2*i+1}, 0xffff0000, v{res+i}")
    k("s_barrier")
    g = Gemm(k, 1, 2, 4, G, S, nsteps, STG, lambda mi, ni: acc0 + 16*ni, xf, wf, vXa, vWa, vXl, vWl,
             xoff=lambda mi, kk: kk*1024,
             woff=lambda ni, kk, j: kk*2048 + j*512 + ni*256, bpos=bpos, rpg=rpg)
    g.run()
    if is_wo:
        srd(k, 16, 6, WS_STAT, 2048 * 128)
        k(f"v_add_f32 v2, v{acc0}, v{acc0+1}")
        k(f"v_mul_f32 v3, v{acc0}, v{acc0}")
        k(f"v_fmac_f32 v3, v{acc0+1}, v{acc0+1}")
        for i in range(2, 32):
            k(f"v_add_f32 v2, v2, v{acc0+i}")
            k(f"v_fmac_f32 v3, v{acc0+i}, v{acc0+i}")
    for i in range(16):
        k(f"v_cvt_pk_bf16_f32 v{res+i}, v{acc0+2*i}, v{acc0+2*i+1}")
    for q in range(4):
        if is_wo: k(f"buffer_store_dwordx4 {vr(res+4*q, 4)}, v{vT}, s[12:15], s34 offen offset:{q*1024}")
        else:     k(f"buffer_store_dwordx4 {vr(res+4*q, 4)}, v{vR}, s[8:11], s33 offen offset:{q*32}")
    if is_wo:
        xlane_sum(k, 2, 4, (5,))
        xlane_sum(k, 3, 4, (5,))
        k(f"""
        v_lshlrev_b32 v5, 7, v0
        s_lshl_b32 s35, s32, 12
        s_lshl_b32 s36, s31, 3
        s_add_u32 s35, s35, s36
        s_mov_b32 exec_hi, 0
        buffer_store_dwordx2 v[2:3], v5, s[16:19], s35 offen
        """)
    if STAMP: stamp(k); k("s_waitcnt vmcnt(0)"); stamp_out(k, 6, 4)
    tail(k)
    return k

def k_gu(S=5, bpos=2, rpg=2):
    XB = 16384
    GOFF = XB
    UOFF = XB + 7168 + 32
    STG = XB + 14336 + 256
    k = Kern("gu_kernel", (256, 1, 1), (512, 1, 1), S * STG, vgpr=256)
    head(k, 256, [("wg", 4), ("wu", 6), ("ws", 24)])
    k("""
    s_and_b32 s30, s90, 1
    s_lshl_b32 s30, s30, 2
    s_lshr_b32 s92, s91, 3
    s_add_u32 s30, s30, s92
    s_lshr_b32 s31, s90, 1
    s_lshl_b32 s31, s31, 3
    s_and_b32 s92, s91, 7
    s_add_u32 s31, s31, s92
    s_and_b32 s32, s3, 3
    s_mul_i32 s33, s31, 112
    s_and_b32 s34, s31, 1
    s_lshl_b32 s35, s34, 4
    s_add_u32 s35, s35, s33
    s_cmp_eq_u32 s34, 0
    s_cselect_b32 s36, 96, 0
    s_add_u32 s36, s36, s33
    s_waitcnt lgkmcnt(0)
    """)
    srd(k, 8, 24, WS_H, 4 * MB)
    srd(k, 16, 24, WS_STAT, 2048 * 128)
    srd(k, 20, 24, WS_CSUM, 2 * 3584 * 64)
    al = Alloc(8)
    acc0 = al(128, 4)
    xf = [al(8, 4), al(8, 4)]
    wf = [al(16, 4), al(16, 4)]
    vXa, vWa, vXl, vWl, vT = al(), al(), al(), al(), al()
    vD = al(5)
    vS = al(4)
    k.vgpr = al.n
    k(f"v_lshlrev_b32 v{vT}, 4, v0")
    k(f"""
    s_lshl_b32 s37, s30, 3
    s_lshl_b32 s38, s32, 1
    s_add_u32 s37, s37, s38
    s_lshl_b32 s38, s37, 12
    s_add_u32 s39, s38, 4096
    v_and_b32 v2, 31, v0
    v_lshlrev_b32 v2, 7, v2
    v_lshrrev_b32 v3, 5, v0
    v_lshlrev_b32 v3, 6, v3
    v_add_u32 v2, v2, v3
    """)
    for mi in range(2):
        for q in range(4):
            k(f"buffer_load_dwordx4 {vr(acc0 + 16*mi + 4*q, 4)}, v2, s[16:19], s{38+mi} offen offset:{q*16}")
    k(f"""
    v_and_b32 v3, 3, v0
    v_bfe_u32 v4, v0, 3, 1
    v_lshlrev_b32 v4, 2, v4
    v_bfe_u32 v5, v0, 2, 1
    v_lshlrev_b32 v5, 3, v5
    v_add3_u32 v3, v3, v4, v5
    v_bfe_u32 v4, v0, 4, 1
    v_mul_u32_u24 v4, 3584, v4
    v_add_u32 v3, v3, v4
    v_lshlrev_b32 v3, 6, v3
    v_lshrrev_b32 v4, 5, v0
    v_lshlrev_b32 v4, 5, v4
    v_add_u32 v3, v3, v4
    s_cmp_ge_u32 s3, 4
    s_cbranch_scc1 gu_b
    """)
    def path(isB):
        Nt = 3 if isB else 4
        t0 = 4 if isB else 0
        k.nst = 2
        for ni in range(Nt):
            t = t0 + ni
            if t < 6: k(f"s_add_u32 s44, s35, {16*t}")
            else: k("s_mov_b32 s44, s36")
            k("s_lshl_b32 s44, s44, 6")
            for q in range(2):
                k(f"buffer_load_dwordx4 {vr(acc0 + 32 + 8*ni + 4*q, 4)}, v3, s[20:23], s44 offen offset:{q*16}")
        if not isB:
            for i in range(3):
                k(f"""
                s_mul_i32 s44, s3, 3
                s_add_u32 s44, s44, {i}
                s_lshr_b32 s45, s44, 1
                s_and_b32 s44, s44, 1
                s_lshl_b32 s46, s30, 3
                s_add_u32 s45, s45, s46
                s_lshl_b32 s45, s45, 16
                s_lshl_b32 s44, s44, 10
                s_add_u32 s45, s45, s44
                v_add_u32 v{vD+i}, s45, v{vT}
                """)
            k("s_mul_i32 s42, s3, 3072")
            pieces = [(8, vD+i, 40, 42, i*1024) for i in range(3)]
            steps = [(40, 2048)]
            npc = 3
        else:
            k(f"""
            s_add_u32 s44, s32, 12
            s_lshr_b32 s45, s44, 1
            s_and_b32 s44, s44, 1
            s_lshl_b32 s46, s30, 3
            s_add_u32 s45, s45, s46
            s_lshl_b32 s45, s45, 16
            s_lshl_b32 s44, s44, 10
            s_add_u32 s45, s45, s44
            v_add_u32 v{vD}, s45, v{vT}
            s_add_u32 s42, s32, 12
            s_lshl_b32 s42, s42, 10
            s_cmp_ge_u32 s32, 2
            s_cselect_b32 s4, s6, s4
            s_cselect_b32 s5, s7, s5
            s_cselect_b32 s43, {UOFF-GOFF}, 0
            s_add_u32 s43, s43, {GOFF}
            s_and_b32 s47, s32, 1
            s_lshl_b32 s44, s47, 12
            s_add_u32 s43, s43, s44
            s_lshl_b32 s46, s47, 8
            """)
            srd(k, 12, 4, 0, 7 * MB)
            for i in range(4):
                d = vD + 1 + i
                k(f"""
                v_add_u32 v4, s46, v0
                v_add_u32 v4, {64*i}, v4
                v_mul_u32_u24 v5, 586, v4
                v_lshrrev_b32 v5, 16, v5
                v_mul_u32_u24 v6, 112, v5
                v_sub_u32 v4, v4, v6
                v_lshlrev_b32 v5, 3, v5
                v_bfe_u32 v6, v4, 2, 2
                v_add_u32 v5, v5, v6
                v_lshrrev_b32 v6, 4, v4
                v_and_b32 v4, 3, v4
                v_cmp_le_u32 vcc, 3, v6
                v_cndmask_b32 v7, 0, 1, vcc
                v_mul_u32_u24 v1, 3, v7
                v_sub_u32 v1, v6, v1
                v_lshlrev_b32 v1, 2, v1
                v_add_u32 v1, v1, v4
                v_lshlrev_b32 v1, 3, v1
                v_add_u32 v1, s35, v1
                v_cmp_eq_u32 vcc, 6, v6
                v_lshrrev_b32 v6, 1, v4
                v_cndmask_b32 v7, v7, v6, vcc
                v_and_b32 v4, 1, v4
                v_lshlrev_b32 v4, 3, v4
                v_add_u32 v4, s36, v4
                v_cndmask_b32 v1, v1, v4, vcc
                v_lshlrev_b32 v7, 2, v7
                v_add_u32 v5, v5, v7
                v_mul_u32_u24 v5, 7168, v5
                v_lshlrev_b32 v1, 1, v1
                v_add_u32 v{d}, v5, v1
                """)
            k(f"""
            s_cmp_eq_u32 s47, 0
            s_cselect_b32 s48, 0, 0x40000000
            v_add_u32 v{vD+4}, s48, v{vD+4}
            s_cselect_b32 s49, s43, {S*STG - 3072}
            """)
            pieces = [(8, vD, 40, 42, 0)] + [(12, vD+1+i, 41, 43, i*1024) for i in range(3)] + [(12, vD+4, 41, 49, 3072)]
            steps = [(40, 2048), (41, 32*7168)]
            npc = 5
        k("s_mov_b32 s40, 0\ns_mov_b32 s41, 0\ns_mov_b32 s62, 0\ns_mov_b32 s60, 0")
        dma = Dma(k, pieces, S, STG, steps)
        if isB:
            iss0 = dma.issue
            def iss():
                o = iss0()
                o.append("s_cmp_eq_u32 s47, 0")
                o.append(f"s_cselect_b32 s49, s43, {S*STG - 3072}")
                return o
            dma.issue = iss
        stamp(k)
        for s in range(S):
            for a in dma.issue(): k(a)
        stamp(k)
        k(f"""
        s_lshl_b32 s44, s32, 12
        v_add_u32 v{vXl}, s44, v{vT}
        """)
        w_lane_read(k, vWl, 4, 5, 1792, UOFF - GOFF)
        k(f"""
        v_add_u32 v{vWl}, {GOFF}, v{vWl}
        v_mov_b32 v{vXa}, v{vXl}
        v_mov_b32 v{vWa}, v{vWl}
        s_mov_b32 s44, 0x07060302
        s_waitcnt vmcnt({S*npc + 2*Nt})
        """)
        for mi in range(2):
            a = acc0 + 16 * mi
            for q in range(1, 8):
                k(f"v_add_f32 v{a}, v{a}, v{a+2*q}")
                k(f"v_add_f32 v{a+1}, v{a+1}, v{a+2*q+1}")
            xlane_sum(k, a, 4, (5,))
            xlane_sum(k, a + 1, 4, (5,))
            b = xf[1] + 4 * mi
            k(f"""
            v_mul_f32 v{a}, 0xba800000, v{a}
            v_mul_f32 v{a+1}, 0x3a800000, v{a+1}
            v_fma_f32 v{a+1}, -v{a}, v{a}, v{a+1}
            v_max_f32 v{a+1}, 0, v{a+1}
            v_add_f32 v{vS+2*mi+1}, 0x3727c5ac, v{a+1}
            v_rsq_f32 v{vS+2*mi}, v{vS+2*mi+1}
            v_and_b32 v4, 0xffff0000, v{a}
            v_sub_f32 v5, v{a}, v4
            v_mul_f32 v{vS+2*mi}, 0xbfb8aa3b, v{vS+2*mi}
            v_and_b32 v6, 0xffff0000, v5
            v_sub_f32 v7, v5, v6
            v_perm_b32 v{b}, v6, v4, s44
            v_mov_b32 v{b+1}, v{b}
            v_perm_b32 v{b+2}, v4, v7, s44
            v_mov_b32 v{b+3}, 0
            """)
        k(f"s_waitcnt vmcnt({S*npc})")
        for ni in range(Nt):
            a = acc0 + 32 + 8 * ni
            for q in range(1, 8): k(f"v_add_f32 v{a}, v{a}, v{a+q}")
            xlane_sum(k, a, 4, (5,))
            b = wf[1] + 4 * ni
            k(f"""
            v_and_b32 v4, 0xffff0000, v{a}
            v_sub_f32 v5, v{a}, v4
            v_and_b32 v6, 0xffff0000, v5
            v_sub_f32 v7, v5, v6
            v_perm_b32 v{b}, v4, v4, s44
            v_perm_b32 v{b+1}, v6, v6, s44
            v_perm_b32 v{b+2}, v7, v4, s44
            v_mov_b32 v{b+3}, 0
            """)
        k("v_cmp_gt_u32 vcc, 32, v0")
        for ni in range(Nt):
            for q in range(3): k(f"v_cndmask_b32 v{wf[1]+4*ni+q}, 0, v{wf[1]+4*ni+q}, vcc")
        for ni in range(Nt):
            for mi in range(2):
                k(f"v_mfma_f32_32x32x16_bf16 {vr(acc0+16*(mi*Nt+ni), 16)}, {vr(wf[1]+4*ni, 4)}, {vr(xf[1]+4*mi, 4)}, 0")
        stamp(k)
        k(f"s_waitcnt vmcnt({(S-1)*npc})")
        k("s_barrier")
        def woff(ni, kk, j):
            t = t0 + ni
            return kk*3584 + ((3*j + (t >> 1))*256 + (t & 1)*32 if t < 6 else 6*256 + j*32)
        g = Gemm(k, 2, Nt, 2, 1, S, 32, STG, lambda mi, ni: acc0 + 16*(mi*Nt+ni), xf, wf, vXa, vWa, vXl, vWl,
                 xoff=lambda mi, kk: mi*2048 + kk*1024, woff=woff, dma=dma.issue, npieces=npc, bpos=bpos, rpg=rpg)
        g.run()
        srd(k, 8, 24, WS_ACT, 14 * MB)
        k("s_mul_i32 s37, s37, 224*1024")
        for ni in range(Nt):
            t = t0 + ni
            if t < 6: k(f"s_add_u32 s44, s35, {16*t}")
            else: k("s_mov_b32 s44, s36")
            k("s_lshl_b32 s44, s44, 6")
            k("s_add_u32 s44, s44, s37")
            k("s_add_u32 s45, s44, 224*1024")
            for mi in range(2):
                a = acc0 + 16*(mi*Nt+ni)
                T = xf[0]
                for r in range(8): k(f"v_mul_f32 v{T+r}, v{a+r}, v{vS+2*mi}")
                for r in range(8): k(f"v_exp_f32 v{T+r}, v{T+r}")
                for r in range(8): k(f"v_mul_f32 v{a+r}, v{a+r}, v{a+8+r}")
                for r in range(8): k(f"v_fma_f32 v{T+r}, v{T+r}, v{vS+2*mi+1}, v{vS+2*mi+1}")
                for r in range(8): k(f"v_rcp_f32 v{T+r}, v{T+r}")
                for r in range(8): k(f"v_mul_f32 v{a+r}, v{a+r}, v{T+r}")
                for r in range(4): k(f"v_cvt_pk_bf16_f32 v{a+8+r}, v{a+2*r}, v{a+2*r+1}")
                k(f"buffer_store_dwordx4 {vr(a+8, 4)}, v{vT}, s[8:11], s{44+mi} offen")
        if STAMP: stamp(k); k("s_waitcnt vmcnt(0)"); stamp_out(k, 24, 4)
        k("s_endpgm")
    path(False)
    k("gu_b:")
    path(True)
    tail(k)
    k.lds = S * STG + 1024
    return k

def k_attn():
    S = 4
    FLAG = 65536
    k = Kern("attn_kernel", (256, 1, 1), (512, 1, 1), 65536 + 64, vgpr=128)
    head(k, 256, [("ws", 6)])
    al = Alloc(4)
    qf = al(8, 4); negm = al(16, 4); sa = [al(16, 4), al(16, 4)]; P = al(8, 4); O = al(16, 4); L = al(4, 4)
    sel = al(4, 4); kf = al(8, 4); vf = al(8, 4); vT = al(); vK = al()
    k.vgpr = al.n
    k(f"""
    s_lshl_b32 s30, s90, 2
    s_lshr_b32 s31, s91, 3
    s_add_u32 s30, s30, s31
    s_and_b32 s31, s91, 7
    s_lshl_b32 s32, s30, 17
    s_lshl_b32 s33, s31, 3
    s_add_u32 s33, s33, s3
    v_lshlrev_b32 v{vT}, 4, v0
    s_lshl_b32 s34, s3, 10
    v_add_u32 v{vK}, s34, v{vT}
    s_waitcnt lgkmcnt(0)
    """)
    srd(k, 8, 6, WS_Q, 131072, soff=32)
    srd(k, 12, 6, WS_K, 131072, soff=32)
    srd(k, 16, 6, WS_V, 131072, soff=32)
    srd(k, 20, 6, WS_O, 4 * MB)
    k(f"""
    s_lshl_b32 s35, s33, 11
    buffer_load_dwordx4 {vr(qf,4)}, v{vT}, s[8:11], s35 offen
    buffer_load_dwordx4 {vr(qf+4,4)}, v{vT}, s[8:11], s35 offen offset:1024
    v_bfe_u32 v1, v0, 2, 1
    v_bfe_u32 v2, v0, 4, 1
    v_cmp_eq_u32 vcc, v1, v2
    v_mov_b32 v1, 0x3f803f80
    v_cndmask_b32 v{sel}, 0, v1, vcc
    v_mov_b32 v{sel+1}, v{sel}
    v_mov_b32 v{sel+2}, v{sel}
    v_mov_b32 v{sel+3}, v{sel}
    v_mov_b32 v1, 0
    v_mov_b32 v2, {FLAG}
    ds_write_b32 v2, v1
    s_mov_b32 s36, 1
    """)
    k("attn_restart:")
    def dma(stage_sgpr_off, slot):
        return [f"s_add_u32 m0, s34, {slot*16384}", "s_nop 0",
                f"buffer_load_dwordx4 v{vK}, s[12:15], s37 offen lds",
                f"s_add_u32 m0, s34, {slot*16384 + 8192}", "s_nop 0",
                f"buffer_load_dwordx4 v{vK}, s[16:19], s37 offen lds",
                "s_add_u32 s37, s37, 8192"]
    k(f"""
    s_mov_b32 s38, 0
    s_mov_b32 s39, s36
    v_mov_b32 v{negm}, 0xff800000
    attn_scan:
    buffer_load_dwordx4 {vr(kf,4)}, v{vT}, s[12:15], s38 offen
    buffer_load_dwordx4 {vr(kf+4,4)}, v{vT}, s[12:15], s38 offen offset:1024
    """)
    k("s_cmp_lg_u32 s38, 0")
    k("s_cbranch_scc1 attn_scan2")
    k("s_mov_b32 s37, 0")
    for s in range(S - 1):
        for a in dma(37, s): k(a)
    k(f"s_waitcnt vmcnt({2*(S-1)})")
    k("s_branch attn_scan3")
    k("attn_scan2:")
    k("s_waitcnt vmcnt(0)")
    k("attn_scan3:")
    k(f"""
    v_mfma_f32_32x32x16_bf16 {vr(sa[0],16)}, {vr(kf,4)}, {vr(qf,4)}, 0
    v_mfma_f32_32x32x16_bf16 {vr(sa[0],16)}, {vr(kf+4,4)}, {vr(qf+4,4)}, {vr(sa[0],16)}
    s_add_u32 s38, s38, 2048
    s_sub_u32 s39, s39, 1
    """)
    for r in range(0, 16, 2):
        k(f"v_max3_f32 v{negm}, v{sa[0]+r}, v{sa[0]+r+1}, v{negm}")
    k(f"""
    s_cmp_lg_u32 s39, 0
    s_cbranch_scc1 attn_scan
    v_mov_b32 v1, v{negm}
    v_permlane32_swap_b32 v{negm}, v1
    v_max_f32 v1, v{negm}, v1
    """)
    for r in range(16): k(f"v_sub_f32 v{negm+r}, 0, v1")
    for r in range(16): k(f"v_mov_b32 v{O+r}, 0")
    for r in range(4): k(f"v_mov_b32 v{L+r}, 0")
    for r in range(4): k(f"v_mov_b32 v{P+4+r}, 0")
    for r in range(4): k(f"v_mov_b32 v{vf+4+r}, 0")
    k(f"""
    s_waitcnt vmcnt({2*(S-2)}) lgkmcnt(0)
    s_barrier
    ds_read_b128 {vr(kf,4)}, v{vT}
    ds_read_b128 {vr(kf+4,4)}, v{vT} offset:1024
    ds_read_b128 {vr(vf,4)}, v{vT} offset:8192
    s_waitcnt lgkmcnt(1)
    v_mfma_f32_32x32x16_bf16 {vr(sa[0],16)}, {vr(kf,4)}, {vr(qf,4)}, {vr(negm,16)}
    v_mfma_f32_32x32x16_bf16 {vr(sa[0],16)}, {vr(kf+4,4)}, {vr(qf+4,4)}, {vr(sa[0],16)}
    ds_read_b128 {vr(kf,4)}, v{vT} offset:2048
    ds_read_b128 {vr(kf+4,4)}, v{vT} offset:3072
    s_mov_b32 s39, 4
    s_waitcnt lgkmcnt(0)
    s_nop 7
    """)
    stamp(k)
    k(""".p2align 4
    attn_loop:
    """)
    def koff(t, j): t %= 16; return (t >> 2)*16384 + (t & 3)*2048 + j*1024
    def voff(t, j): return koff(t, j) + 8192
    for t in range(16):
        c, n = sa[t & 1], sa[(t & 1) ^ 1]
        pre = []
        if t & 3 == 2:
            k(f"s_waitcnt vmcnt({2*(S-3)})")
            k("s_barrier")
            pre = dma(37, ((t >> 2) + S - 1) % S)
        E = lambda a, b: [k(f"v_exp_f32 v{c+r}, v{c+r}") for r in range(a, b)]
        C = lambda a, b: [k(f"v_cvt_pk_bf16_f32 v{P+r}, v{c+2*r}, v{c+2*r+1}") for r in range(a, b)]
        k("s_waitcnt lgkmcnt(3)")
        k(f"v_mfma_f32_32x32x16_bf16 {vr(n,16)}, {vr(kf,4)}, {vr(qf,4)}, {vr(negm,16)}")
        k(f"ds_read_b128 {vr(kf,4)}, v{vT} offset:{koff(t+2, 0)}")
        E(0, 4)
        for a in pre[:3]: k(a)
        k("s_waitcnt lgkmcnt(3)")
        k(f"v_mfma_f32_32x32x16_bf16 {vr(O,16)}, {vr(vf+4,4)}, {vr(P+4,4)}, {vr(O,16)}")
        k(f"ds_read_b128 {vr(vf+4,4)}, v{vT} offset:{voff(t, 1)}")
        E(4, 8)
        k(f"v_mfma_f32_16x16x32_bf16 {vr(L,4)}, {vr(sel,4)}, {vr(P+4,4)}, {vr(L,4)}")
        C(0, 4)
        for a in pre[3:]: k(a)
        k("s_waitcnt lgkmcnt(3)")
        k(f"v_mfma_f32_32x32x16_bf16 {vr(n,16)}, {vr(kf+4,4)}, {vr(qf+4,4)}, {vr(n,16)}")
        k(f"ds_read_b128 {vr(kf+4,4)}, v{vT} offset:{koff(t+2, 1)}")
        E(8, 12)
        k("s_waitcnt lgkmcnt(3)")
        k(f"v_mfma_f32_32x32x16_bf16 {vr(O,16)}, {vr(vf,4)}, {vr(P,4)}, {vr(O,16)}")
        k(f"ds_read_b128 {vr(vf,4)}, v{vT} offset:{voff(t+1, 0)}")
        E(12, 16)
        k(f"v_mfma_f32_16x16x32_bf16 {vr(L,4)}, {vr(sel,4)}, {vr(P,4)}, {vr(L,4)}")
        C(4, 8)
    k(f"""
    s_sub_u32 s39, s39, 1
    s_cmp_lg_u32 s39, 0
    s_cbranch_scc1 attn_loop
    s_waitcnt lgkmcnt(0)
    """)
    stamp(k)
    k(f"""
    v_mfma_f32_32x32x16_bf16 {vr(O,16)}, {vr(vf+4,4)}, {vr(P+4,4)}, {vr(O,16)}
    v_mfma_f32_16x16x32_bf16 {vr(L,4)}, {vr(sel,4)}, {vr(P+4,4)}, {vr(L,4)}
    s_waitcnt vmcnt(0)
    s_nop 7
    v_rcp_f32 v1, v{L}
    """)
    for r in range(16): k(f"v_mul_f32 v{O+r}, v{O+r}, v1")
    k(f"""
    s_cmp_lg_u32 s36, 1
    s_cbranch_scc1 attn_store
    v_max3_f32 v2, |v{O}|, |v{O+1}|, |v{L}|
    """)
    k(f"v_mul_f32 v2, 0, v2")
    for r in range(2, 16): k(f"v_fma_f32 v2, 0, v{O+r}, v2")
    k(f"""
    v_fma_f32 v2, 0, v{O}, v2
    v_fma_f32 v2, 0, v{O+1}, v2
    v_add_f32 v2, v2, v{L}
    s_mov_b32 s40, 0x5d800000
    v_cmp_nlt_f32 vcc, v2, s40
    s_nop 1
    s_cbranch_vccz attn_vote
    v_mov_b32 v1, 1
    v_mov_b32 v2, {FLAG}
    ds_write_b32 v2, v1
    attn_vote:
    v_mov_b32 v2, {FLAG}
    s_waitcnt lgkmcnt(0)
    s_barrier
    ds_read_b32 v1, v2
    s_waitcnt lgkmcnt(0)
    v_readfirstlane_b32 s40, v1
    s_cmp_eq_u32 s40, 0
    s_cbranch_scc1 attn_store
    s_mov_b32 s36, 64
    s_branch attn_restart
    attn_store:
    s_lshl_b32 s35, s33, 6
    s_lshl_b32 s40, s30, 1
    s_add_u32 s35, s35, s40
    s_lshl_b32 s35, s35, 10
    """)
    for r in range(8): k(f"v_cvt_pk_bf16_f32 v{O+r}, v{O+2*r}, v{O+2*r+1}")
    k(f"buffer_store_dwordx4 {vr(O,4)}, v{vT}, s[20:23], s35 offen")
    k(f"buffer_store_dwordx4 {vr(O+4,4)}, v{vT}, s[20:23], s35 offen offset:1024")
    if STAMP: stamp(k); k("s_waitcnt vmcnt(0)"); stamp_out(k, 6, 4)
    tail(k)
    return k

def build_all():
    return [k_ln1(), k_csum(), k_qkv(), k_attn(), k_n64("wo", 1024, "wo", WS_O), k_gu(), k_n64("down", 3584, "wd", WS_ACT)]

if __name__ == "__main__":
    out = sys.argv[1] if len(sys.argv) > 1 else "sequential_preLN__mha_block__swiglu_ffn__prompt.s"
    ks = build_all()
    txt = emit(ks)
    open(out, "w").write(txt)
    for k in ks: print(k.name, "vgpr", k.vgpr, "lds", k.lds, "lines", len(k.lines), "nops", k.nops_added)
```

```python
from gen import *
def k_nop():
    k = Kern("nop_kernel", (1,1,1), (64,1,1), 0, vgpr=8)
    k("s_endpgm")
    return k
ks = build_all(); n = k_nop()
open("e_base.s","w").write(emit(ks))
open("e_front.s","w").write(emit(ks+[n], [n,n,n]+ks))
open("e_mid.s","w").write(emit(ks+[n], ks[:4]+[n,n,n]+ks[4:]))
```

```python
import sys, math
from asmlib import *

WS_XN, WS_Q, WS_K, WS_V = 0x0000000, 0x0400000, 0x0800000, 0x0C00000
WS_O, WS_H, WS_ACT = 0x1000000, 0x1400000, 0x1800000
WS_STAT, WS_MU1, WS_RM, WS_MUP, WS_HC = 0x2800000, 0x2900000, 0x2904000, 0x2910000, 0x2A00000
ARG = dict(x=0, wqkv=8, wo=16, wg=32, wu=40, wd=48, out=56, dbg=64, ws=72)
MB = 1 << 20

class Alloc:
    def __init__(self, start=1): self.n = start
    def __call__(self, cnt=1, align=1):
        self.n = (self.n + align - 1) // align * align
        r = self.n; self.n += cnt
        return r

def vr(b, n): return f"v[{b}:{b+n-1}]" if n > 1 else f"v{b}"
def sr(b, n): return f"s[{b}:{b+n-1}]" if n > 1 else f"s{b}"

def load_ptrs(k, names):
    for a, s in names:
        k(f"s_load_dwordx2 s[{s}:{s+1}], s[0:1], {ARG[a]}")

def srd(k, d, ptr, off, size, soff=None):
    if off:
        k(f"s_add_u32 s{d}, s{ptr}, {hex(off)}")
        k(f"s_addc_u32 s{d+1}, s{ptr+1}, 0")
    else:
        k(f"s_mov_b32 s{d}, s{ptr}")
        k(f"s_mov_b32 s{d+1}, s{ptr+1}")
    if soff is not None:
        k(f"s_add_u32 s{d}, s{d}, s{soff}")
        k(f"s_addc_u32 s{d+1}, s{d+1}, 0")
    k(f"s_mov_b32 s{d+2}, {hex(size)}")
    k(f"s_mov_b32 s{d+3}, 0x00020000")

def head(k, nwg, ptrs):
    k(f"s_cmp_ge_u32 s2, {nwg}")
    k(f"s_cbranch_scc1 {k.name}_end")
    k.nst = 0
    if STAMP:
        k("s_memrealtime s[94:95]")
        stamp(k)
    load_ptrs(k, ptrs)
    k("v_lshrrev_b32 v1, 6, v0")
    k("v_and_b32 v0, 63, v0")
    k("v_readfirstlane_b32 s3, v1")
    k("s_and_b32 s90, s2, 7")
    k("s_lshr_b32 s91, s2, 3")
    if STAMP:
        k("s_mov_b32 s93, s3")
        stamp(k)

import os
STAMP = int(os.environ.get("STAMP", "0"))
WS_STAMP = 0x3000000
ST = os.environ.get("ST", "")
if ST: ST = " " + ST
KID = dict(ln1=0, csum=1, qkv=2, attn=3, wo=4, gu=5, down=6)
def stamp(k, i=None, real=False):
    if not STAMP: return
    if not real:
        i = k.nst; k.nst += 1
        assert i <= 8
    k(f"s_mem{'real' if real else ''}time s[{66+2*i}:{67+2*i}]")
    k("s_waitcnt lgkmcnt(0)")
def stamp_out(k, ws, n=None):
    if not STAMP: return
    stamp(k); stamp(k, 11, True)
    n = k.nst
    kid = KID[k.name[:-7]]
    k(f"s_add_u32 s84, s{ws}, {hex(WS_STAMP + kid * 0x100000)}")
    k(f"s_addc_u32 s85, s{ws+1}, 0")
    k("s_mov_b32 s86, 0x100000")
    k("s_mov_b32 s87, 0x00020000")
    k("s_lshl_b32 s92, s2, 3")
    k("s_add_u32 s92, s92, s93")
    k("s_lshl_b32 s92, s92, 6")
    k("s_mov_b64 exec, 1")
    k("v_mov_b32 v1, 0")
    for i in list(range(n)) + [9, 10, 11]:
        k({9: f"v_mov_b32 v2, {n}", 10: "v_mov_b32 v2, s94"}.get(i, f"v_mov_b32 v2, s{66+2*i}"))
        k(f"buffer_store_dword v2, v1, s[84:87], s92 offen offset:{4*i}")
    k("s_waitcnt vmcnt(0)")

def tail(k):
    k(f"{k.name}_end:")
    k("s_endpgm")

def tile_map_4x8(k, mb, nb):
    k(f"""
    s_lshr_b32 s{mb}, s90, 1
    s_lshl_b32 s{mb}, s{mb}, 2
    s_lshr_b32 s92, s91, 3
    s_add_u32 s{mb}, s{mb}, s92
    s_and_b32 s{nb}, s90, 1
    s_lshl_b32 s{nb}, s{nb}, 3
    s_and_b32 s92, s91, 7
    s_add_u32 s{nb}, s{nb}, s92
    """)

def xlane_sum(k, v, t, bits):
    for b in bits:
        if b == 0:
            k(f"v_add_f32_dpp v{v}, v{v}, v{v} quad_perm:[1,0,3,2] row_mask:0xf bank_mask:0xf")
        elif b == 1:
            k(f"v_add_f32_dpp v{v}, v{v}, v{v} quad_perm:[2,3,0,1] row_mask:0xf bank_mask:0xf")
        elif b == 2:
            k(f"v_add_f32_dpp v{v}, v{v}, v{v} row_half_mirror row_mask:0xf bank_mask:0xf")
        elif b == 3:
            k(f"v_add_f32_dpp v{v}, v{v}, v{v} row_ror:8 row_mask:0xf bank_mask:0xf")
        else:
            k(f"v_mov_b32 v{t}, v{v}")
            k(f"v_permlane{16 if b == 4 else 32}_swap_b32 v{v}, v{t}")
            k(f"v_add_f32 v{v}, v{v}, v{t}")

def k_ln1(prefetch=True):
    k = Kern("ln1_kernel", (256, 1, 1), (256, 1, 1), 512, vgpr=80)
    head(k, 256, [("x", 4), ("ws", 6), ("wqkv", 24), ("wo", 26)])
    k("""
    s_lshl_b32 s30, s90, 8
    s_lshl_b32 s31, s91, 3
    s_add_u32 s30, s30, s31
    v_and_b32 v1, 7, v0
    v_lshrrev_b32 v2, 3, v0
    v_add_u32 v3, s30, v1
    v_lshlrev_b32 v3, 11, v3
    v_lshlrev_b32 v4, 4, v2
    v_add_u32 v3, v3, v4
    s_lshl_b32 s31, s3, 9
    v_add_u32 v3, s31, v3
    s_waitcnt lgkmcnt(0)
    """)
    srd(k, 8, 4, 0, 4 * MB)
    srd(k, 12, 6, WS_XN, 4 * MB)
    for i in range(4):
        k(f"buffer_load_dwordx4 v[{8+4*i}:{11+4*i}], v3, s[8:11], 0 offen offset:{128*i}")
    srd(k, 20, 26, 0, 2 * MB)
    srd(k, 44, 6, WS_MU1, 0x8000)
    k("""
    s_lshl_b32 s36, s2, 2
    s_add_u32 s36, s36, s3
    s_lshl_b32 s37, s36, 11
    v_lshlrev_b32 v62, 5, v0
    buffer_load_dwordx4 v[68:71], v62, s[20:23], s37 offen
    buffer_load_dwordx4 v[72:75], v62, s[20:23], s37 offen offset:16
    """)
    npf = 2
    if prefetch:
        srd(k, 16, 24, 0, 6 * MB)
        k("""
        s_lshl_b32 s32, s91, 5
        s_lshl_b32 s33, s3, 3
        s_add_u32 s32, s32, s33
        s_mul_i32 s32, s32, 6144
        s_and_b32 s33, s90, 1
        s_lshl_b32 s33, s33, 10
        s_add_u32 s32, s32, s33
        v_lshlrev_b32 v5, 4, v0
        """)
        for i in range(8):
            for sec in range(3):
                k(f"s_add_u32 s33, s32, {i*6144 + sec*2048}")
                k(f"buffer_load_dwordx4 v[64:67], v5, s[16:19], s33 offen")
                npf += 1
    k("""
    s_lshr_b32 s31, s30, 5
    s_lshl_b32 s31, s31, 16
    s_lshl_b32 s34, s3, 14
    s_add_u32 s31, s31, s34
    s_and_b32 s34, s30, 31
    s_lshl_b32 s34, s34, 4
    s_add_u32 s31, s31, s34
    v_lshrrev_b32 v4, 4, v0
    v_lshlrev_b32 v4, 10, v4
    v_and_b32 v5, 1, v2
    v_lshlrev_b32 v5, 9, v5
    v_add_u32 v4, v4, v5
    v_lshlrev_b32 v5, 4, v1
    v_add_u32 v4, v4, v5
    v_add_u32 v4, s31, v4
    s_movk_i32 s40, 0x1000
    s_movk_i32 s41, 0x2000
    s_movk_i32 s42, 0x3000
    s_lshl_b32 s35, s3, 5
    v_lshlrev_b32 v6, 2, v1
    v_add_u32 v7, s35, v6
    """)
    k(f"s_waitcnt vmcnt({npf})")
    stamp(k)
    F = 24
    for i in range(16):
        k(f"v_lshlrev_b32 v{F+2*i}, 16, v{8+i}")
        k(f"v_and_b32 v{F+2*i+1}, 0xffff0000, v{8+i}")
    def tree(dst, op):
        k(f"v_add_f32 v{dst}, v{F}, v{F+1}") if op == "sum" else None
    k(f"v_add_f32 v56, v{F}, v{F+1}")
    k(f"v_add_f32 v57, v{F+2}, v{F+3}")
    for i in range(4, 32, 2):
        k(f"v_add_f32 v56, v56, v{F+i}")
        k(f"v_add_f32 v57, v57, v{F+i+1}")
    k("v_add_f32 v56, v56, v57")
    xlane_sum(k, 56, 57, (3, 4, 5))
    k("""
    ds_write_b32 v7, v56
    s_waitcnt lgkmcnt(0)
    s_barrier
    ds_read_b32 v58, v6
    ds_read_b32 v59, v6 offset:32
    ds_read_b32 v60, v6 offset:64
    ds_read_b32 v61, v6 offset:96
    s_waitcnt lgkmcnt(0)
    v_add_f32 v58, v58, v59
    v_add_f32 v60, v60, v61
    v_add_f32 v58, v58, v60
    v_mul_f32 v58, 0x3a800000, v58
    s_lshl_b32 s38, s30, 2
    v_cmp_gt_u32 vcc, 8, v0
    s_cmp_eq_u32 s3, 0
    s_cselect_b64 exec, vcc, 0
    buffer_store_dword v58, v6, s[44:47], s38 offen
    s_mov_b64 exec, -1
    """)
    for i in range(32):
        k(f"v_sub_f32 v{F+i}, v{F+i}, v58")
    k(f"v_mul_f32 v56, v{F}, v{F}")
    k(f"v_mul_f32 v57, v{F+1}, v{F+1}")
    for i in range(2, 32, 2):
        k(f"v_fmac_f32 v56, v{F+i}, v{F+i}")
        k(f"v_fmac_f32 v57, v{F+i+1}, v{F+i+1}")
    k("v_add_f32 v56, v56, v57")
    xlane_sum(k, 56, 57, (3, 4, 5))
    k("""
    ds_write_b32 v7, v56 offset:128
    s_waitcnt lgkmcnt(0)
    s_barrier
    ds_read_b32 v58, v6 offset:128
    ds_read_b32 v59, v6 offset:160
    ds_read_b32 v60, v6 offset:192
    ds_read_b32 v61, v6 offset:224
    s_waitcnt lgkmcnt(0)
    v_add_f32 v58, v58, v59
    v_add_f32 v60, v60, v61
    v_add_f32 v58, v58, v60
    v_mov_b32 v59, 0x3727c5ac
    v_fmac_f32 v59, 0x3a800000, v58
    v_rsq_f32 v59, v59
    """)
    for i in range(32):
        k(f"v_mul_f32 v{F+i}, v{F+i}, v59")
    for i in range(16):
        k(f"v_cvt_pk_bf16_f32 v{8+i}, v{F+2*i}, v{F+2*i+1}")
    for i, so in enumerate(("0", "s40", "s41", "s42")):
        k(f"buffer_store_dwordx4 v[{8+4*i}:{11+4*i}], v4, s[12:15], {so} offen")
    k(f"s_waitcnt vmcnt({npf - 2 + 5})")
    k("v_lshlrev_b32 v56, 16, v68")
    k("v_and_b32 v57, 0xffff0000, v68")
    for i in range(1, 8):
        k(f"v_lshlrev_b32 v58, 16, v{68+i}")
        k(f"v_and_b32 v59, 0xffff0000, v{68+i}")
        k("v_add_f32 v56, v56, v58")
        k("v_add_f32 v57, v57, v59")
    k("v_add_f32 v56, v56, v57")
    xlane_sum(k, 56, 57, (0, 1, 2, 3, 4, 5))
    k(f"""
    v_mul_f32 v56, 0x3a800000, v56
    s_lshl_b32 s36, s36, 2
    s_add_u32 s36, s36, {WS_RM - WS_MU1}
    v_mov_b32 v57, 0
    s_mov_b64 exec, 1
    buffer_store_dword v56, v57, s[44:47], s36 offen
    """)
    stamp(k)
    k("s_waitcnt vmcnt(0)")
    stamp_out(k, 6, 3)
    tail(k)
    return k

def csum_addr(k, wg_sgpr, wave="s3"):
    k(f"""
    s_and_b32 s50, {wg_sgpr}, 1
    s_lshr_b32 s52, {wg_sgpr}, 1
    s_and_b32 s52, s52, 15
    s_lshr_b32 s51, {wg_sgpr}, 5
    """)

def k_csum():
    k = Kern("csum_kernel", (224, 1, 1), (512, 1, 1), 16384, vgpr=64)
    head(k, 224, [("wg", 4), ("wu", 6), ("ws", 24)])
    csum_addr(k, "s2")
    k("""
    s_waitcnt lgkmcnt(0)
    s_cmp_eq_u32 s50, 0
    s_cselect_b32 s4, s4, s6
    s_cselect_b32 s5, s5, s7
    """)
    srd(k, 8, 4, 0, 7 * MB)
    srd(k, 12, 24, WS_CSUM, 2 * 3584 * 64)
    k("""
    s_lshl_b32 s53, s52, 6
    s_lshl_b32 s54, s3, 3
    s_add_u32 s53, s53, s54
    s_mul_i32 s53, s53, 7168
    s_lshl_b32 s54, s51, 10
    s_add_u32 s53, s53, s54
    v_lshlrev_b32 v1, 4, v0
    """)
    for i in range(8):
        k(f"s_add_u32 s54, s53, {i*7168}")
        k(f"buffer_load_dwordx4 v[{8+4*i}:{11+4*i}], v1, s[8:11], s54 offen")
    k("s_waitcnt vmcnt(0)")
    for e in range(4):
        k(f"v_lshlrev_b32 v{40+2*e}, 16, v{8+e}")
        k(f"v_and_b32 v{41+2*e}, 0xffff0000, v{8+e}")
    for i in range(1, 8):
        for e in range(4):
            k(f"v_lshlrev_b32 v48, 16, v{8+4*i+e}")
            k(f"v_and_b32 v49, 0xffff0000, v{8+4*i+e}")
            k(f"v_add_f32 v{40+2*e}, v{40+2*e}, v48")
            k(f"v_add_f32 v{41+2*e}, v{41+2*e}, v49")
    k("""
    s_lshl_b32 s54, s3, 11
    v_lshlrev_b32 v2, 5, v0
    v_add_u32 v2, s54, v2
    ds_write_b128 v2, v[40:43]
    ds_write_b128 v2, v[44:47] offset:16
    s_lshl_b32 s54, s3, 8
    v_lshlrev_b32 v3, 2, v0
    v_add_u32 v3, s54, v3
    s_waitcnt lgkmcnt(0)
    s_barrier
    """)
    for w in range(8):
        k(f"ds_read_b32 v{8+w}, v3 offset:{w*2048}")
    k("s_waitcnt lgkmcnt(0)")
    for w in range(1, 8):
        k(f"v_add_f32 v8, v8, v{8+w}")
    k("""
    s_mul_i32 s54, s50, 3584
    s_lshl_b32 s55, s51, 9
    s_add_u32 s54, s54, s55
    s_lshl_b32 s55, s3, 6
    s_add_u32 s54, s54, s55
    s_lshl_b32 s54, s54, 6
    s_lshl_b32 s55, s52, 2
    s_add_u32 s54, s54, s55
    v_lshlrev_b32 v4, 6, v0
    buffer_store_dword v8, v4, s[12:15], s54 offen
    s_waitcnt vmcnt(0)
    """)
    tail(k)
    return k

class Fifo:
    def __init__(self, k): self.k, self.q = k, []
    def issue(self, tag): self.q.append(tag)
    def need(self, tags):
        pos = [i for i, t in enumerate(self.q) if t in tags]
        if not pos: return
        younger = len(self.q) - 1 - max(pos)
        n = min(younger, 15)
        self.k(f"s_waitcnt lgkmcnt({n})")
        self.q = self.q[len(self.q) - n:] if n else []
    def drain(self):
        if self.q: self.k("s_waitcnt lgkmcnt(0)")
        self.q = []

class Gemm:
    def __init__(self, k, Mt, Nt, KK, G, S, nsteps, stage_bytes, acc, xf, wf, vXa, vWa, vXl, vWl,
                 xoff, woff, swap=lambda ni: False, dma=None, npieces=0, bpos=2, rpg=2, sRd=60, sCnt=61):
        self.__dict__.update(locals())
        self.fifo = Fifo(k)
        self.ng = KK // G
        assert KK % G == 0

    def reads(self, g, st):
        out = []
        for q in range(self.G):
            kk = g * self.G + q
            xs = [(f"ds_read_b128 {vr(self.xf[st] + 4*(q*self.Mt+mi), 4)}, v{self.vXa} offset:{self.xoff(mi, kk)}", ("x", st, q, mi)) for mi in range(self.Mt)]
            ws = []
            for ni in range(self.Nt):
                b = self.wf[st] + 4 * (q * self.Nt + ni)
                ws.append([(f"ds_read_b64_tr_b16 {vr(b + 2*j, 2)}, v{self.vWa} offset:{self.woff(ni, kk, j)}", ("w", st, q, ni)) for j in range(2)])
            out.append(xs[0]); out += ws[0]; out += xs[1:]
            for w in ws[1:]: out += w
        return out

    def mfmas(self, st):
        out = []
        for q in range(self.G):
            for ni in range(self.Nt):
                for mi in range(self.Mt):
                    a = vr(self.wf[st] + 4 * (q * self.Nt + ni), 4)
                    b = vr(self.xf[st] + 4 * (q * self.Mt + mi), 4)
                    if self.swap(ni): a, b = b, a
                    d = vr(self.acc(mi, ni), 16)
                    if os.environ.get("MF16"):
                        for h in range(2):
                            d = vr(self.acc(mi, ni) + 8*((st+q)&1) + 4*h, 4)
                            out.append((f"v_mfma_f32_16x16x32_bf16 {d}, {a}, {b}, {d}", {("x", st, q, mi), ("w", st, q, ni)}))
                        continue
                    out.append((f"v_mfma_f32_32x32x16_bf16 {d}, {a}, {b}, {d}", {("x", st, q, mi), ("w", st, q, ni)}))
        return out

    def advance_slot(self):
        k = self.k
        return [f"s_add_u32 s{self.sRd}, s{self.sRd}, {self.stage_bytes}",
                f"s_cmp_ge_u32 s{self.sRd}, {self.S*self.stage_bytes}",
                f"s_cselect_b32 s{self.sRd}, 0, s{self.sRd}",
                f"v_add_u32 v{self.vXa}, s{self.sRd}, v{self.vXl}",
                f"v_add_u32 v{self.vWa}, s{self.sRd}, v{self.vWl}"]

    def group(self, st, fillers, barrier=None):
        k = self.k
        ms = self.mfmas(st)
        fl = list(fillers)
        for i, (m, tags) in enumerate(ms):
            if barrier is not None and i == min(self.bpos, len(ms) - 1):
                for a, t in fl:
                    k(a)
                    if t: self.fifo.issue(t)
                self.fifo.drain()
                if barrier[0] is not None: k(f"s_waitcnt vmcnt({barrier[0]})")
                k("s_barrier")
                fl = list(barrier[1])
            self.fifo.need(tags)
            k(m)
            n = 0
            while fl and n < self.rpg:
                a, t = fl.pop(0)
                k(a)
                if t: self.fifo.issue(t); n += 1
                elif a.startswith("buffer"): n += 2
        for a, t in fl:
            k(a)
            if t: self.fifo.issue(t)

    def step(self, par, dma, vm, last=False, extra=False):
        for g in range(self.ng):
            st = (par + g) & 1
            if g < self.ng - 1:
                f = self.reads(g + 1, st ^ 1)
                if extra and g == 0: f = f + [(a, None) for a in self.dma()]
                if g == self.ng - 2 and not last: f = f + [(a, None) for a in self.advance_slot()]
                self.group(st, f)
            elif last:
                self.group(st, [])
            else:
                pre = [(a, None) for a in self.advance_slot()] if self.ng == 1 else []
                post = self.reads(0, st ^ 1)
                if dma:
                    d = [(a, None) for a in self.dma()]
                    post = post[:3] + d + post[3:] if False else post + d
                self.group(st, pre, barrier=(vm, post))
        return (par + self.ng) & 1

    def first_reads(self):
        for a, t in self.reads(0, 0):
            self.k(a); self.fifo.issue(t)

    def run(self):
        k, S, p = self.k, self.S, self.npieces
        stamp(k)
        self.first_reads()
        U = 2 if self.ng & 1 else 1
        n1 = (self.nsteps - S) if self.dma else (self.nsteps - 1)
        par = 0
        s = 0
        if self.dma:
            issued = 2
            while issued != s + S:
                issued += 1
                par = self.step(par, True, (issued - (s + 2)) * p, extra=True)
                issued += 1; s += 1
                assert issued <= s + S
        while (n1 - s) % U:
            par = self.step(par, True if self.dma else False, (S - 2) * p if self.dma else None); s += 1
        if n1 - s > 0:
            lab = k.label("loop")
            k(f"s_mov_b32 s{self.sCnt}, {(n1 - s)//U}")
            state = list(self.fifo.q)
            k(".p2align 4")
            k(f"{lab}:")
            for u in range(U):
                par = self.step(par, True if self.dma else False, (S - 2) * p if self.dma else None)
            assert [t for t in self.fifo.q] == state[len(state)-len(self.fifo.q):] or True
            k(f"s_sub_u32 s{self.sCnt}, s{self.sCnt}, 1")
            k(f"s_cmp_lg_u32 s{self.sCnt}, 0")
            k(f"s_cbranch_scc1 {lab}")
            self.fifo.q = list(state)
        for s in range(n1, self.nsteps):
            last = s == self.nsteps - 1
            vm = max(0, self.nsteps - 2 - s) * p if self.dma else None
            par = self.step(par, False, vm, last)
        stamp(k)

class Dma:
    def __init__(self, k, pieces, S, stage_bytes, steps, sWr=62):
        self.__dict__.update(locals())
        k(f"s_mov_b32 s64, {stage_bytes}")
        k(f"s_mov_b32 s65, {-(S-1)*stage_bytes}")
    def issue(self):
        out = []
        for (srd_, va, so, mb, mi) in self.pieces:
            out.append(f"s_add_u32 m0, s{mb}, {mi}")
            out.append("s_nop 0")
            out.append(f"buffer_load_dwordx4 v{va}, s[{srd_}:{srd_+3}], s{so} offen lds")
        for (so, inc) in self.steps:
            out.append(f"s_add_u32 s{so}, s{so}, {inc}")
        bases = sorted({p[3] for p in self.pieces})
        out.append(f"s_add_u32 s{self.sWr}, s{self.sWr}, 1")
        out.append(f"s_cmp_ge_u32 s{self.sWr}, {self.S}")
        out.append(f"s_cselect_b32 s{self.sWr}, 0, s{self.sWr}")
        out.append("s_cselect_b32 s63, s65, s64")
        for b in bases:
            out.append(f"s_add_u32 s{b}, s{b}, s63")
        return out

def loader_loop(k, dma, S, p, nsteps, sCnt=61, first=2):
    nst0 = k.nst
    stamp(k)
    for s in range(first):
        for a in dma.issue(): k(a)
    stamp(k)
    k(f"s_waitcnt vmcnt({(first-1)*p})")
    stamp(k)
    k("s_barrier")
    stamp(k)
    issued, s = first, 0
    def interval(s, issued):
        tgt = min(nsteps, s + S, issued + (1 if s == 0 else 2))
        for _ in range(issued, tgt):
            for a in dma.issue(): k(a)
        k(f"s_waitcnt vmcnt({(tgt - (s + 2)) * p})")
        k("s_barrier")
        return tgt
    while issued != s - 1 + S:
        issued = interval(s, issued); s += 1
    nloop = nsteps - issued
    lab = k.label("ld")
    k(f"s_mov_b32 s{sCnt}, {nloop}")
    k(f"{lab}:")
    interval(s, issued)
    k(f"s_sub_u32 s{sCnt}, s{sCnt}, 1")
    k(f"s_cmp_lg_u32 s{sCnt}, 0")
    k(f"s_cbranch_scc1 {lab}")
    s += nloop; issued = nsteps
    while s < nsteps - 1:
        interval(s, issued); s += 1
    stamp_out(k, 6)
    k("s_endpgm")
    k.nst = nst0

def w_lane_dma(k, dst, t1, t2, ldw):
    k(f"""
    v_lshrrev_b32 v{t1}, 5, v0
    v_lshlrev_b32 v{t1}, 2, v{t1}
    v_bfe_u32 v{t2}, v0, 2, 2
    v_add_u32 v{t1}, v{t1}, v{t2}
    s_mov_b32 s92, {ldw}
    v_mul_lo_u32 v{dst}, v{t1}, s92
    v_bfe_u32 v{t1}, v0, 4, 1
    v_lshlrev_b32 v{t1}, 6, v{t1}
    v_and_b32 v{t2}, 3, v0
    v_lshlrev_b32 v{t2}, 4, v{t2}
    v_add3_u32 v{dst}, v{dst}, v{t1}, v{t2}
    """)

def w_lane_read(k, dst, t1, t2, hi_stride, g_stride):
    k(f"""
    v_lshrrev_b32 v{t1}, 5, v0
    v_mul_u32_u24 v{dst}, {hi_stride}, v{t1}
    v_bfe_u32 v{t1}, v0, 2, 2
    v_lshlrev_b32 v{t1}, 6, v{t1}
    v_add_u32 v{dst}, v{dst}, v{t1}
    v_bfe_u32 v{t1}, v0, 4, 1
    v_mul_u32_u24 v{t1}, {g_stride}, v{t1}
    v_add_u32 v{dst}, v{dst}, v{t1}
    v_and_b32 v{t1}, 1, v0
    v_lshlrev_b32 v{t1}, 4, v{t1}
    v_bfe_u32 v{t2}, v0, 1, 1
    v_lshlrev_b32 v{t2}, 3, v{t2}
    v_add3_u32 v{dst}, v{dst}, v{t1}, v{t2}
    """)

def k_qkv(S=4, G=1, bpos=2, rpg=2):
    XB, WBY = 16384, 24576
    STG = XB + WBY
    k = Kern("qkv_kernel", (256, 1, 1), (512, 1, 1), S * STG, vgpr=256)
    head(k, 256, [("wqkv", 4), ("ws", 6)])
    tile_map_4x8(k, 30, 31)
    k("s_waitcnt lgkmcnt(0)")
    k("s_cmp_ge_u32 s3, 4")
    k(f"s_cbranch_scc0 qkv_comp")
    srd(k, 8, 6, WS_XN, 4 * MB)
    srd(k, 12, 4, 0, 6 * MB)
    k("s_sub_u32 s3, s3, 4")
    k("""
    s_lshl_b32 s32, s30, 2
    s_add_u32 s32, s32, s3
    s_lshl_b32 s32, s32, 16
    v_lshlrev_b32 v1, 4, v0
    v_add_u32 v1, s32, v1
    """)
    for i in range(4): k(f"v_add_u32 v{8+i}, {i*1024}, v1")
    w_lane_dma(k, 2, 3, 4, 6144)
    k("""
    s_mul_i32 s33, s3, 16*6144
    s_lshl_b32 s34, s31, 7
    s_add_u32 s33, s33, s34
    v_add_u32 v2, s33, v2
    """)
    for i in range(6): k(f"v_add_u32 v{12+i}, {(i//3)*8*6144 + (i%3)*2048}, v2")
    k(f"""
    s_mov_b32 s40, 0
    s_mov_b32 s41, 0
    s_lshl_b32 s42, s3, 12
    s_mul_i32 s43, s3, 6144
    s_add_u32 s43, s43, {XB}
    s_mov_b32 s62, 0
    """)
    pieces = [(8, 8+i, 40, 42, i*1024) for i in range(4)] + [(12, 12+i, 41, 43, i*1024) for i in range(6)]
    dma = Dma(k, pieces, S, STG, [(40, 4096), (41, 64*6144)])
    loader_loop(k, dma, S, 10, 16)
    k("qkv_comp:")
    al = Alloc(8)
    acc0 = al(96, 4)
    xf = [al(8*G, 4), al(8*G, 4)]
    wf = [al(12*G, 4), al(12*G, 4)]
    vXa, vWa, vXl, vWl, vO = al(), al(), al(), al(), al()
    k.vgpr = al.n
    srd(k, 8, 6, WS_Q, 12 * MB)
    k(f"""
    s_lshr_b32 s32, s3, 1
    s_and_b32 s33, s3, 1
    s_lshl_b32 s34, s32, 13
    v_lshlrev_b32 v{vO}, 4, v0
    v_add_u32 v{vXl}, s34, v{vO}
    """)
    w_lane_read(k, vWl, 2, 3, 3072, 32)
    k(f"""
    s_lshl_b32 s34, s33, 8
    s_add_u32 s34, s34, {XB}
    v_add_u32 v{vWl}, s34, v{vWl}
    v_mov_b32 v{vXa}, v{vXl}
    v_mov_b32 v{vWa}, v{vWl}
    s_mov_b32 s60, 0
    """)
    for i in range(96): k(f"v_mov_b32 v{acc0+i}, 0")
    k(f"""
    s_lshl_b32 s34, s31, 1
    s_add_u32 s34, s34, s33
    s_lshl_b32 s34, s34, 17
    s_lshl_b32 s35, s30, 2
    s_lshl_b32 s36, s32, 1
    s_add_u32 s35, s35, s36
    s_lshl_b32 s35, s35, 11
    s_add_u32 s34, s34, s35
    s_add_u32 s35, s34, {4*MB}
    s_add_u32 s36, s34, {8*MB}
    s_barrier
    """)
    g = Gemm(k, 2, 3, 4, G, S, 16, STG, lambda mi, ni: acc0 + 16*(mi*3+ni), xf, wf, vXa, vWa, vXl, vWl,
             xoff=lambda mi, kk: mi*4096 + kk*1024,
             woff=lambda ni, kk, j: kk*6144 + ni*1024 + j*512,
             swap=lambda ni: ni == 2, bpos=bpos, rpg=rpg)
    g.run()
    qs = math.log2(math.e) / math.sqrt(32.0)
    import struct
    k(f"s_mov_b32 s37, {hex(struct.unpack('<I', struct.pack('<f', qs))[0])}")
    for ni in (1, 2, 0):
        for mi in range(2):
            a = acc0 + 16*(mi*3+ni)
            if ni == 0:
                for r in range(16): k(f"v_mul_f32 v{a+r}, s37, v{a+r}")
            for r in range(8): k(f"v_cvt_pk_bf16_f32 v{a+r}, v{a+2*r}, v{a+2*r+1}")
            for j in range(2):
                k(f"buffer_store_dwordx4 {vr(a+4*j, 4)}, v{vO}, s[8:11], s{34+ni} offen offset:{mi*2048 + j*1024}{ST}")
    if STAMP: stamp(k); k("s_waitcnt vmcnt(0)"); stamp_out(k, 6, 4)
    tail(k)
    return k

def k_n64(name, K, wname, xoff_ws, S=6, G=4, bpos=0, rpg=3):
    XB, WBY = 16384, 8192
    STG = XB + WBY
    nsteps = K // 64
    is_wo = name == "wo"
    k = Kern(name + "_kernel", (256, 1, 1), (512, 1, 1), S * STG, vgpr=256)
    head(k, 256, [(wname, 4), ("ws", 6), ("x" if is_wo else "out", 24)])
    tile_map_4x8(k, 30, 31)
    k("s_waitcnt lgkmcnt(0)")
    k("s_cmp_ge_u32 s3, 4")
    k(f"s_cbranch_scc0 {name}_comp")
    srd(k, 8, 6, xoff_ws, 2048 * K * 2)
    srd(k, 12, 4, 0, K * 2048)
    k("s_sub_u32 s3, s3, 4")
    k(f"""
    s_lshl_b32 s32, s30, 2
    s_add_u32 s32, s32, s3
    s_mul_i32 s32, s32, {K//16*1024}
    v_lshlrev_b32 v1, 4, v0
    v_add_u32 v1, s32, v1
    """)
    for i in range(4): k(f"v_add_u32 v{8+i}, {i*1024}, v1")
    w_lane_dma(k, 2, 3, 4, 2048)
    k("""
    s_lshl_b32 s33, s3, 15
    s_lshl_b32 s34, s31, 7
    s_add_u32 s33, s33, s34
    v_add_u32 v12, s33, v2
    v_add_u32 v13, 8*2048, v12
    """)
    k(f"""
    s_mov_b32 s40, 0
    s_mov_b32 s41, 0
    s_lshl_b32 s42, s3, 12
    s_lshl_b32 s43, s3, 11
    s_add_u32 s43, s43, {XB}
    s_mov_b32 s62, 0
    """)
    pieces = [(8, 8+i, 40, 42, i*1024) for i in range(4)] + [(12, 12+i, 41, 43, i*1024) for i in range(2)]
    dma = Dma(k, pieces, S, STG, [(40, 4096), (41, 64*2048)])
    loader_loop(k, dma, S, 6, nsteps)
    k(f"{name}_comp:")
    al = Alloc(8)
    acc0 = al(32, 4)
    xf = [al(4*G, 4), al(4*G, 4)]
    wf = [al(8*G, 4), al(8*G, 4)]
    res = al(16, 4)
    mup = al(17, 4) if is_wo else None
    vXa, vWa, vXl, vWl, vT, vR = al(), al(), al(), al(), al(), al()
    k.vgpr = al.n
    k(f"""
    s_lshl_b32 s32, s30, 2
    s_add_u32 s32, s32, s3
    v_lshlrev_b32 v{vT}, 4, v0
    """)
    k(f"""
    v_and_b32 v2, 31, v0
    v_lshlrev_b32 v2, 11, v2
    v_lshrrev_b32 v3, 5, v0
    v_lshlrev_b32 v3, 4, v3
    v_add_u32 v{vR}, v2, v3
    s_lshl_b32 s33, s32, 16
    s_lshl_b32 s34, s31, 7
    s_add_u32 s33, s33, s34
    """)
    k(f"""
    s_lshl_b32 s34, s32, 6
    s_lshl_b32 s35, s31, 2
    s_add_u32 s34, s34, s35
    s_lshl_b32 s34, s34, 10
    """)
    srd(k, 8, 24, 0, 4 * MB)
    srd(k, 12, 6, WS_H, 4 * MB)
    for q in range(4):
        if is_wo: k(f"buffer_load_dwordx4 {vr(res+4*q, 4)}, v{vR}, s[8:11], s33 offen offset:{q*32}")
        else:     k(f"buffer_load_dwordx4 {vr(res+4*q, 4)}, v{vT}, s[12:15], s34 offen offset:{q*1024}")
    if is_wo:
        srd(k, 16, 6, WS_MU1, 0x10000 + 0x40000)
        k(f"""
        s_lshl_b32 s35, s32, 12
        s_add_u32 s35, s35, {WS_MUP - WS_MU1}
        s_lshl_b32 s36, s32, 7
        v_and_b32 v2, 31, v0
        v_lshlrev_b32 v2, 2, v2
        """)
        for q in range(4):
            k(f"buffer_load_dwordx4 {vr(mup+4*q, 4)}, v{vT}, s[16:19], s35 offen offset:{q*1024}")
        k(f"buffer_load_dword v{mup+16}, v2, s[16:19], s36 offen")
    k(f"""
    s_lshl_b32 s35, s3, 12
    v_add_u32 v{vXl}, s35, v{vT}
    """)
    w_lane_read(k, vWl, 2, 3, 1024, 32)
    k(f"""
    v_add_u32 v{vWl}, {XB}, v{vWl}
    v_mov_b32 v{vXa}, v{vXl}
    v_mov_b32 v{vWa}, v{vWl}
    s_mov_b32 s60, 0
    """)
    for i in range(32): k(f"v_mov_b32 v{acc0+i}, 0")
    k("s_barrier")
    g = Gemm(k, 1, 2, 4, G, S, nsteps, STG, lambda mi, ni: acc0 + 16*ni, xf, wf, vXa, vWa, vXl, vWl,
             xoff=lambda mi, kk: kk*1024,
             woff=lambda ni, kk, j: kk*2048 + j*512 + ni*256, bpos=bpos, rpg=rpg)
    g.run()
    k("s_waitcnt vmcnt(0)")
    T = xf[0]
    if is_wo:
        for i in range(1, 16): k(f"v_add_f32 v{mup}, v{mup}, v{mup+i}")
        xlane_sum(k, mup, 4, (5,))
        k(f"v_add_f32 v{mup}, v{mup}, v{mup+16}")
    for i in range(16):
        k(f"v_lshlrev_b32 v{T+(2*i)%8}, 16, v{res+i}")
        k(f"v_and_b32 v{T+(2*i+1)%8}, 0xffff0000, v{res+i}")
        k(f"v_add_f32 v{acc0+2*i}, v{acc0+2*i}, v{T+(2*i)%8}")
        k(f"v_add_f32 v{acc0+2*i+1}, v{acc0+2*i+1}, v{T+(2*i+1)%8}")
        k(f"v_cvt_pk_bf16_f32 v{res+i}, v{acc0+2*i}, v{acc0+2*i+1}")
        if i % 4 == 3:
            q = i // 4
            if is_wo: k(f"buffer_store_dwordx4 {vr(res+4*q, 4)}, v{vT}, s[12:15], s34 offen offset:{q*1024}{ST}")
            else:     k(f"buffer_store_dwordx4 {vr(res+4*q, 4)}, v{vR}, s[8:11], s33 offen offset:{q*32}")
    if is_wo:
        srd(k, 8, 6, WS_HC, 4 * MB)
        srd(k, 16, 6, WS_STAT, 64 * 2048)
        H2 = wf[0]
        for i in range(32): k(f"v_sub_f32 v{acc0+i}, v{acc0+i}, v{mup}")
        k(f"v_mul_f32 v2, v{acc0}, v{acc0}")
        k(f"v_mul_f32 v3, v{acc0+1}, v{acc0+1}")
        for i in range(16):
            k(f"v_cvt_pk_bf16_f32 v{H2+i}, v{acc0+2*i}, v{acc0+2*i+1}")
            if i:
                k(f"v_fmac_f32 v2, v{acc0+2*i}, v{acc0+2*i}")
                k(f"v_fmac_f32 v3, v{acc0+2*i+1}, v{acc0+2*i+1}")
            if i % 4 == 3:
                k(f"buffer_store_dwordx4 {vr(H2+i-3, 4)}, v{vT}, s[8:11], s34 offen offset:{(i//4)*1024}{ST}")
        k("v_add_f32 v2, v2, v3")
        xlane_sum(k, 2, 4, (5,))
        k(f"""
        s_lshl_b32 s35, s32, 11
        s_lshr_b32 s36, s31, 2
        s_lshl_b32 s36, s36, 9
        s_add_u32 s35, s35, s36
        s_and_b32 s36, s31, 3
        s_lshl_b32 s36, s36, 2
        s_add_u32 s35, s35, s36
        s_mov_b32 exec_hi, 0
        buffer_store_dword v2, v{vT}, s[16:19], s35 offen
        """)
    if STAMP: stamp(k); k("s_waitcnt vmcnt(0)"); stamp_out(k, 6, 4)
    tail(k)
    return k

def k_gu(S=5, bpos=2, rpg=2):
    XB = 16384
    GOFF = XB
    UOFF = XB + 7168 + 32
    STG = XB + 14336 + 256
    k = Kern("gu_kernel", (256, 1, 1), (512, 1, 1), S * STG, vgpr=256)
    head(k, 256, [("wg", 4), ("wu", 6), ("ws", 24)])
    k("""
    s_and_b32 s30, s90, 1
    s_lshl_b32 s30, s30, 2
    s_lshr_b32 s92, s91, 3
    s_add_u32 s30, s30, s92
    s_lshr_b32 s31, s90, 1
    s_lshl_b32 s31, s31, 3
    s_and_b32 s92, s91, 7
    s_add_u32 s31, s31, s92
    s_and_b32 s32, s3, 3
    s_mul_i32 s33, s31, 112
    s_and_b32 s34, s31, 1
    s_lshl_b32 s35, s34, 4
    s_add_u32 s35, s35, s33
    s_cmp_eq_u32 s34, 0
    s_cselect_b32 s36, 96, 0
    s_add_u32 s36, s36, s33
    s_waitcnt lgkmcnt(0)
    """)
    srd(k, 8, 24, WS_HC, 4 * MB)
    srd(k, 16, 24, WS_STAT, 64 * 2048)
    al = Alloc(8)
    acc0 = al(128, 4)
    xf = [al(8, 4), al(8, 4)]
    wf = [al(16, 4), al(16, 4)]
    vXa, vWa, vXl, vWl, vT = al(), al(), al(), al(), al()
    vD = al(5)
    vS = al(4)
    k.vgpr = al.n
    k(f"v_lshlrev_b32 v{vT}, 4, v0")
    k(f"""
    s_lshl_b32 s37, s30, 3
    s_lshl_b32 s38, s32, 1
    s_add_u32 s37, s37, s38
    s_lshl_b32 s38, s37, 11
    s_cmp_ge_u32 s3, 4
    s_cbranch_scc1 gu_b
    """)
    def path(isB):
        Nt = 3 if isB else 4
        t0 = 4 if isB else 0
        k.nst = 2
        if not isB:
            for i in range(3):
                k(f"""
                s_mul_i32 s44, s3, 3
                s_add_u32 s44, s44, {i}
                s_lshr_b32 s45, s44, 1
                s_and_b32 s44, s44, 1
                s_lshl_b32 s46, s30, 3
                s_add_u32 s45, s45, s46
                s_lshl_b32 s45, s45, 16
                s_lshl_b32 s44, s44, 10
                s_add_u32 s45, s45, s44
                v_add_u32 v{vD+i}, s45, v{vT}
                """)
            k("s_mul_i32 s42, s3, 3072")
            pieces = [(8, vD+i, 40, 42, i*1024) for i in range(3)]
            steps = [(40, 2048)]
            npc = 3
        else:
            k(f"""
            s_add_u32 s44, s32, 12
            s_lshr_b32 s45, s44, 1
            s_and_b32 s44, s44, 1
            s_lshl_b32 s46, s30, 3
            s_add_u32 s45, s45, s46
            s_lshl_b32 s45, s45, 16
            s_lshl_b32 s44, s44, 10
            s_add_u32 s45, s45, s44
            v_add_u32 v{vD}, s45, v{vT}
            s_add_u32 s42, s32, 12
            s_lshl_b32 s42, s42, 10
            s_cmp_ge_u32 s32, 2
            s_cselect_b32 s4, s6, s4
            s_cselect_b32 s5, s7, s5
            s_cselect_b32 s43, {UOFF-GOFF}, 0
            s_add_u32 s43, s43, {GOFF}
            s_and_b32 s47, s32, 1
            s_lshl_b32 s44, s47, 12
            s_add_u32 s43, s43, s44
            s_lshl_b32 s46, s47, 8
            """)
            srd(k, 12, 4, 0, 7 * MB)
            for i in range(4):
                d = vD + 1 + i
                k(f"""
                v_add_u32 v4, s46, v0
                v_add_u32 v4, {64*i}, v4
                v_mul_u32_u24 v5, 586, v4
                v_lshrrev_b32 v5, 16, v5
                v_mul_u32_u24 v6, 112, v5
                v_sub_u32 v4, v4, v6
                v_lshlrev_b32 v5, 3, v5
                v_bfe_u32 v6, v4, 2, 2
                v_add_u32 v5, v5, v6
                v_lshrrev_b32 v6, 4, v4
                v_and_b32 v4, 3, v4
                v_cmp_le_u32 vcc, 3, v6
                v_cndmask_b32 v7, 0, 1, vcc
                v_mul_u32_u24 v1, 3, v7
                v_sub_u32 v1, v6, v1
                v_lshlrev_b32 v1, 2, v1
                v_add_u32 v1, v1, v4
                v_lshlrev_b32 v1, 3, v1
                v_add_u32 v1, s35, v1
                v_cmp_eq_u32 vcc, 6, v6
                v_lshrrev_b32 v6, 1, v4
                v_cndmask_b32 v7, v7, v6, vcc
                v_and_b32 v4, 1, v4
                v_lshlrev_b32 v4, 3, v4
                v_add_u32 v4, s36, v4
                v_cndmask_b32 v1, v1, v4, vcc
                v_lshlrev_b32 v7, 2, v7
                v_add_u32 v5, v5, v7
                v_mul_u32_u24 v5, 7168, v5
                v_lshlrev_b32 v1, 1, v1
                v_add_u32 v{d}, v5, v1
                """)
            k(f"""
            s_cmp_eq_u32 s47, 0
            s_cselect_b32 s48, 0, 0x40000000
            v_add_u32 v{vD+4}, s48, v{vD+4}
            s_cselect_b32 s49, s43, {S*STG - 3072}
            """)
            pieces = [(8, vD, 40, 42, 0)] + [(12, vD+1+i, 41, 43, i*1024) for i in range(3)] + [(12, vD+4, 41, 49, 3072)]
            steps = [(40, 2048), (41, 32*7168)]
            npc = 5
        k("s_mov_b32 s40, 0\ns_mov_b32 s41, 0\ns_mov_b32 s62, 0\ns_mov_b32 s60, 0")
        dma = Dma(k, pieces, S, STG, steps)
        if isB:
            iss0 = dma.issue
            def iss():
                o = iss0()
                o.append("s_cmp_eq_u32 s47, 0")
                o.append(f"s_cselect_b32 s49, s43, {S*STG - 3072}")
                return o
            dma.issue = iss
        stamp(k)
        for s in range(2):
            for a in dma.issue(): k(a)
        for q in range(4):
            k(f"buffer_load_dwordx4 {vr(wf[1] + 4*q, 4)}, v{vT}, s[16:19], s38 offen offset:{q*1024}")
        stamp(k)
        k(f"""
        s_lshl_b32 s44, s32, 12
        v_add_u32 v{vXl}, s44, v{vT}
        """)
        w_lane_read(k, vWl, 4, 5, 1792, UOFF - GOFF)
        k(f"""
        v_add_u32 v{vWl}, {GOFF}, v{vWl}
        v_mov_b32 v{vXa}, v{vXl}
        v_mov_b32 v{vWa}, v{vWl}
        """)
        for i in range(32 * Nt): k(f"v_mov_b32 v{acc0+i}, 0")
        k("s_waitcnt vmcnt(0)")
        for mi in range(2):
            a = wf[1] + 8 * mi
            for q in range(1, 8): k(f"v_add_f32 v{a}, v{a}, v{a+q}")
            xlane_sum(k, a, 4, (5,))
            k(f"""
            v_mov_b32 v{vS+2*mi+1}, 0x3727c5ac
            v_fmac_f32 v{vS+2*mi+1}, 0x3a800000, v{a}
            v_rsq_f32 v{vS+2*mi}, v{vS+2*mi+1}
            v_mul_f32 v{vS+2*mi}, 0xbfb8aa3b, v{vS+2*mi}
            """)
        stamp(k)
        k("s_barrier")
        def woff(ni, kk, j):
            t = t0 + ni
            return kk*3584 + ((3*j + (t >> 1))*256 + (t & 1)*32 if t < 6 else 6*256 + j*32)
        g = Gemm(k, 2, Nt, 2, 1, S, 32, STG, lambda mi, ni: acc0 + 16*(mi*Nt+ni), xf, wf, vXa, vWa, vXl, vWl,
                 xoff=lambda mi, kk: mi*2048 + kk*1024, woff=woff, dma=dma.issue, npieces=npc, bpos=bpos, rpg=rpg)
        g.run()
        srd(k, 8, 24, WS_ACT, 14 * MB)
        k("s_mul_i32 s37, s37, 224*1024")
        for ni in range(Nt):
            t = t0 + ni
            if t < 6: k(f"s_add_u32 s44, s35, {16*t}")
            else: k("s_mov_b32 s44, s36")
            k("s_lshl_b32 s44, s44, 6")
            k("s_add_u32 s44, s44, s37")
            k("s_add_u32 s45, s44, 224*1024")
            for mi in range(2):
                a = acc0 + 16*(mi*Nt+ni)
                T = xf[0]
                for r in range(8): k(f"v_mul_f32 v{T+r}, v{a+r}, v{vS+2*mi}")
                for r in range(8): k(f"v_exp_f32 v{T+r}, v{T+r}")
                for r in range(8): k(f"v_mul_f32 v{a+r}, v{a+r}, v{a+8+r}")
                for r in range(8): k(f"v_fma_f32 v{T+r}, v{T+r}, v{vS+2*mi+1}, v{vS+2*mi+1}")
                for r in range(8): k(f"v_rcp_f32 v{T+r}, v{T+r}")
                for r in range(8): k(f"v_mul_f32 v{a+r}, v{a+r}, v{T+r}")
                for r in range(4): k(f"v_cvt_pk_bf16_f32 v{a+8+r}, v{a+2*r}, v{a+2*r+1}")
                k(f"buffer_store_dwordx4 {vr(a+8, 4)}, v{vT}, s[8:11], s{44+mi} offen{ST}")
        if STAMP: stamp(k); k("s_waitcnt vmcnt(0)"); stamp_out(k, 24, 4)
        k("s_endpgm")
    path(False)
    k("gu_b:")
    path(True)
    tail(k)
    k.lds = S * STG + 1024
    return k

def k_attn(prefetch=True):
    S = 4
    FLAG = 65536
    k = Kern("attn_kernel", (256, 1, 1), (512, 1, 1), 65536 + 64, vgpr=128)
    head(k, 256, [("ws", 6), ("wg", 44), ("wu", 46), ("wd", 48), ("wo", 50)])
    al = Alloc(4)
    qf = al(8, 4); negm = al(16, 4); sa = [al(16, 4), al(16, 4)]; P = al(8, 4); O = al(16, 4); L = al(4, 4)
    sel = al(4, 4); kf = al(8, 4); vf = al(8, 4); rm = al(16, 4); pf = al(4, 4); vT = al(); vK = al()
    k.vgpr = al.n
    k(f"""
    s_lshl_b32 s30, s90, 2
    s_lshr_b32 s31, s91, 3
    s_add_u32 s30, s30, s31
    s_and_b32 s31, s91, 7
    s_lshl_b32 s32, s30, 17
    s_lshl_b32 s33, s31, 3
    s_add_u32 s33, s33, s3
    v_lshlrev_b32 v{vT}, 4, v0
    s_lshl_b32 s34, s3, 10
    v_add_u32 v{vK}, s34, v{vT}
    s_lshl_b32 s35, s33, 11
    s_waitcnt lgkmcnt(0)
    """)
    srd(k, 8, 6, WS_Q, 131072, soff=32)
    srd(k, 12, 6, WS_K, 131072, soff=32)
    srd(k, 16, 6, WS_V, 131072, soff=32)
    def dma(slot):
        return [f"s_add_u32 m0, s34, {slot*16384}", "s_nop 0",
                f"buffer_load_dwordx4 v{vK}, s[12:15], s37 offen lds",
                f"s_add_u32 m0, s34, {slot*16384 + 8192}", "s_nop 0",
                f"buffer_load_dwordx4 v{vK}, s[16:19], s37 offen lds",
                "s_add_u32 s37, s37, 8192"]
    PF = [f"buffer_load_dwordx4 {vr(pf,4)}, v{vT}, s[24:27], s41 offen", "s_add_u32 s41, s41, 1024"] if prefetch else []
    npf = 1 if prefetch else 0
    k(f"""
    buffer_load_dwordx4 {vr(qf,4)}, v{vT}, s[8:11], s35 offen
    buffer_load_dwordx4 {vr(qf+4,4)}, v{vT}, s[8:11], s35 offen offset:1024
    s_mov_b32 s36, 1
    s_mov_b32 s37, 0
    """)
    for a in dma(0): k(a)
    k(f"""
    s_lshr_b32 s38, s3, 1
    s_movk_i32 s26, 14336
    s_cmp_eq_u32 s38, 1
    s_cselect_b32 s44, s46, s44
    s_cselect_b32 s45, s47, s45
    s_cmp_eq_u32 s38, 2
    s_cselect_b32 s44, s48, s44
    s_cselect_b32 s45, s49, s45
    s_cmp_eq_u32 s38, 3
    s_cselect_b32 s44, s50, s44
    s_cselect_b32 s45, s51, s45
    s_cselect_b32 s26, 4096, s26
    s_lshl_b32 s38, s2, 1
    s_and_b32 s39, s3, 1
    s_add_u32 s38, s38, s39
    s_mul_i32 s38, s38, s26
    s_add_u32 s24, s44, s38
    s_addc_u32 s25, s45, 0
    s_mov_b32 s27, 0x00020000
    s_mov_b32 s41, 0
    """)
    srd(k, 20, 6, WS_MU1, 0x10000 + 0x40000)
    k(f"""
    s_lshl_b32 s38, s30, 7
    s_add_u32 s38, s38, {WS_RM - WS_MU1}
    v_lshrrev_b32 v1, 5, v0
    v_lshlrev_b32 v1, 5, v1
    """)
    for q, off in enumerate((0, 16, 64, 80)):
        k(f"buffer_load_dwordx4 {vr(rm+4*q,4)}, v1, s[20:23], s38 offen offset:{off}")
    k(f"""
    v_bfe_u32 v1, v0, 2, 1
    v_bfe_u32 v2, v0, 4, 1
    v_cmp_eq_u32 vcc, v1, v2
    v_mov_b32 v1, 0x3f803f80
    v_cndmask_b32 v{sel}, 0, v1, vcc
    v_mov_b32 v{sel+1}, v{sel}
    v_mov_b32 v{sel+2}, v{sel}
    v_mov_b32 v{sel+3}, v{sel}
    v_mov_b32 v1, 0
    v_mov_b32 v2, {FLAG}
    ds_write_b32 v2, v1
    s_branch attn_go
    """)
    k("attn_restart:")
    k(f"""
    s_mov_b32 s38, 0
    v_mov_b32 v{negm}, 0xff800000
    attn_scan:
    buffer_load_dwordx4 {vr(kf,4)}, v{vT}, s[12:15], s38 offen
    buffer_load_dwordx4 {vr(kf+4,4)}, v{vT}, s[12:15], s38 offen offset:1024
    s_waitcnt vmcnt(0)
    v_mfma_f32_32x32x16_bf16 {vr(sa[0],16)}, {vr(kf,4)}, {vr(qf,4)}, 0
    v_mfma_f32_32x32x16_bf16 {vr(sa[0],16)}, {vr(kf+4,4)}, {vr(qf+4,4)}, {vr(sa[0],16)}
    s_add_u32 s38, s38, 2048
    """)
    for r in range(0, 16, 2):
        k(f"v_max3_f32 v{negm}, v{sa[0]+r}, v{sa[0]+r+1}, v{negm}")
    k(f"""
    s_cmp_lg_u32 s38, 131072
    s_cbranch_scc1 attn_scan
    s_mov_b32 s37, 0
    """)
    for a in dma(0): k(a)
    for q in range(4): k(f"buffer_load_dwordx4 {vr(pf,4)}, v{vT}, s[12:15], 0 offen")
    k("attn_go:")
    for s in range(1, S - 1):
        for a in dma(s) + PF: k(a)
    for r in range(16): k(f"v_mov_b32 v{O+r}, 0")
    for r in range(4): k(f"v_mov_b32 v{L+r}, 0")
    for r in range(4): k(f"v_mov_b32 v{P+4+r}, 0")
    for r in range(4): k(f"v_mov_b32 v{vf+4+r}, 0")
    k(f"""
    s_waitcnt vmcnt({4 + (2+npf)*(S-2)}) lgkmcnt(0)
    s_barrier
    ds_read_b128 {vr(kf,4)}, v{vT}
    ds_read_b128 {vr(kf+4,4)}, v{vT} offset:1024
    ds_read_b128 {vr(vf,4)}, v{vT} offset:8192
    s_waitcnt lgkmcnt(2)
    v_mfma_f32_32x32x16_bf16 {vr(sa[0],16)}, {vr(kf,4)}, {vr(qf,4)}, 0
    s_waitcnt lgkmcnt(1)
    v_mfma_f32_32x32x16_bf16 {vr(sa[0],16)}, {vr(kf+4,4)}, {vr(qf+4,4)}, {vr(sa[0],16)}
    ds_read_b128 {vr(kf,4)}, v{vT} offset:2048
    ds_read_b128 {vr(kf+4,4)}, v{vT} offset:3072
    s_mov_b32 s39, 4
    s_cmp_lg_u32 s36, 1
    s_cbranch_scc1 attn_havemax
    v_max_f32 v{negm}, v{sa[0]}, v{sa[0]+1}
    """)
    for r in range(2, 16, 2):
        k(f"v_max3_f32 v{negm}, v{sa[0]+r}, v{sa[0]+r+1}, v{negm}")
    k(f"""
    attn_havemax:
    v_mov_b32 v1, v{negm}
    v_permlane32_swap_b32 v{negm}, v1
    v_max_f32 v1, v{negm}, v1
    """)
    for r in range(16): k(f"v_sub_f32 v{negm+r}, 0, v1")
    for r in range(16): k(f"v_sub_f32 v{sa[0]+r}, v{sa[0]+r}, v1")
    k("s_waitcnt lgkmcnt(0)")
    stamp(k)
    k(""".p2align 4
    attn_loop:
    """)
    def koff(t, j): t %= 16; return (t >> 2)*16384 + (t & 3)*2048 + j*1024
    def voff(t, j): return koff(t, j) + 8192
    for t in range(16):
        c, n = sa[t & 1], sa[(t & 1) ^ 1]
        pre = []
        if t & 3 == 2:
            k(f"s_waitcnt vmcnt({(2+npf)*(S-3) + npf})")
            k("s_barrier")
            pre = dma(((t >> 2) + S - 1) % S) + PF
        E = lambda a, b: [k(f"v_exp_f32 v{c+r}, v{c+r}") for r in range(a, b)]
        C = lambda a, b: [k(f"v_cvt_pk_bf16_f32 v{P+r}, v{c+2*r}, v{c+2*r+1}") for r in range(a, b)]
        k("s_waitcnt lgkmcnt(3)")
        k(f"v_mfma_f32_32x32x16_bf16 {vr(n,16)}, {vr(kf,4)}, {vr(qf,4)}, {vr(negm,16)}")
        k(f"ds_read_b128 {vr(kf,4)}, v{vT} offset:{koff(t+2, 0)}")
        E(0, 4)
        for a in pre[:3]: k(a)
        k("s_waitcnt lgkmcnt(3)")
        k(f"v_mfma_f32_32x32x16_bf16 {vr(O,16)}, {vr(vf+4,4)}, {vr(P+4,4)}, {vr(O,16)}")
        k(f"ds_read_b128 {vr(vf+4,4)}, v{vT} offset:{voff(t, 1)}")
        E(4, 8)
        k(f"v_mfma_f32_16x16x32_bf16 {vr(L,4)}, {vr(sel,4)}, {vr(P+4,4)}, {vr(L,4)}")
        C(0, 4)
        for a in pre[3:7]: k(a)
        k("s_waitcnt lgkmcnt(3)")
        k(f"v_mfma_f32_32x32x16_bf16 {vr(n,16)}, {vr(kf+4,4)}, {vr(qf+4,4)}, {vr(n,16)}")
        k(f"ds_read_b128 {vr(kf+4,4)}, v{vT} offset:{koff(t+2, 1)}")
        E(8, 12)
        for a in pre[7:]: k(a)
        k("s_waitcnt lgkmcnt(3)")
        k(f"v_mfma_f32_32x32x16_bf16 {vr(O,16)}, {vr(vf,4)}, {vr(P,4)}, {vr(O,16)}")
        k(f"ds_read_b128 {vr(vf,4)}, v{vT} offset:{voff(t+1, 0)}")
        E(12, 16)
        k(f"v_mfma_f32_16x16x32_bf16 {vr(L,4)}, {vr(sel,4)}, {vr(P,4)}, {vr(L,4)}")
        C(4, 8)
    k(f"""
    s_sub_u32 s39, s39, 1
    s_cmp_lg_u32 s39, 0
    s_cbranch_scc1 attn_loop
    s_waitcnt lgkmcnt(0)
    """)
    stamp(k)
    k(f"""
    v_mfma_f32_32x32x16_bf16 {vr(O,16)}, {vr(vf+4,4)}, {vr(P+4,4)}, {vr(O,16)}
    v_mfma_f32_16x16x32_bf16 {vr(L,4)}, {vr(sel,4)}, {vr(P+4,4)}, {vr(L,4)}
    s_waitcnt vmcnt(0)
    s_nop 7
    v_rcp_f32 v1, v{L}
    """)
    for r in range(16): k(f"v_mul_f32 v{O+r}, v{O+r}, v1")
    k(f"""
    s_cmp_lg_u32 s36, 1
    s_cbranch_scc1 attn_store
    v_max3_f32 v2, |v{O}|, |v{O+1}|, |v{L}|
    """)
    k(f"v_mul_f32 v2, 0, v2")
    for r in range(2, 16): k(f"v_fma_f32 v2, 0, v{O+r}, v2")
    k(f"""
    v_fma_f32 v2, 0, v{O}, v2
    v_fma_f32 v2, 0, v{O+1}, v2
    v_add_f32 v2, v2, v{L}
    s_mov_b32 s40, 0x5d800000
    v_cmp_nlt_f32 vcc, v2, s40
    s_nop 1
    s_cbranch_vccz attn_vote
    v_mov_b32 v1, 1
    v_mov_b32 v2, {FLAG}
    ds_write_b32 v2, v1
    attn_vote:
    v_mov_b32 v2, {FLAG}
    s_waitcnt lgkmcnt(0)
    s_barrier
    ds_read_b32 v1, v2
    s_waitcnt lgkmcnt(0)
    v_readfirstlane_b32 s40, v1
    s_cmp_eq_u32 s40, 0
    s_cbranch_scc1 attn_store
    s_mov_b32 s36, 64
    s_branch attn_restart
    attn_store:
    s_lshl_b32 s35, s33, 6
    s_lshl_b32 s40, s30, 1
    s_add_u32 s35, s35, s40
    s_lshl_b32 s35, s35, 10
    """)
    srd(k, 8, 6, WS_O, 4 * MB)
    k(f"v_mul_f32 v1, v{O}, v{rm}")
    k(f"v_mul_f32 v2, v{O+1}, v{rm+1}")
    for r in range(2, 16, 2):
        k(f"v_fmac_f32 v1, v{O+r}, v{rm+r}")
        k(f"v_fmac_f32 v2, v{O+r+1}, v{rm+r+1}")
    for r in range(8): k(f"v_cvt_pk_bf16_f32 v{O+r}, v{O+2*r}, v{O+2*r+1}")
    k(f"buffer_store_dwordx4 {vr(O,4)}, v{vT}, s[8:11], s35 offen{ST}")
    k(f"buffer_store_dwordx4 {vr(O+4,4)}, v{vT}, s[8:11], s35 offen offset:1024{ST}")
    k("v_add_f32 v1, v1, v2")
    xlane_sum(k, 1, 2, (5,))
    k(f"""
    s_lshl_b32 s35, s33, 12
    s_lshr_b32 s40, s30, 2
    s_lshl_b32 s40, s40, 9
    s_add_u32 s35, s35, s40
    s_and_b32 s40, s30, 3
    s_lshl_b32 s40, s40, 2
    s_add_u32 s35, s35, s40
    s_add_u32 s35, s35, {WS_MUP - WS_MU1}
    s_mov_b32 exec_hi, 0
    buffer_store_dword v1, v{vT}, s[20:23], s35 offen
    """)
    if STAMP: stamp(k); k("s_waitcnt vmcnt(0)"); stamp_out(k, 6, 4)
    tail(k)
    return k

def build_all():
    return [k_ln1(), k_qkv(), k_attn(), k_n64("wo", 1024, "wo", WS_O), k_gu(), k_n64("down", 3584, "wd", WS_ACT)]

if __name__ == "__main__":
    out = sys.argv[1] if len(sys.argv) > 1 else "sequential_preLN__mha_block__swiglu_ffn__prompt.s"
    ks = build_all()
    txt = emit(ks)
    open(out, "w").write(txt)
    for k in ks: print(k.name, "vgpr", k.vgpr, "lds", k.lds, "lines", len(k.lines), "nops", k.nops_added)
```

```python
import sys, math
from asmlib import *

WS_XN, WS_Q, WS_K, WS_V = 0x0000000, 0x0400000, 0x0800000, 0x0C00000
WS_O, WS_H, WS_ACT = 0x1000000, 0x1400000, 0x1800000
WS_STAT, WS_MU1, WS_RM, WS_MUP, WS_HC = 0x2800000, 0x2900000, 0x2904000, 0x2910000, 0x2A00000
WS_EX = 0x4000000
ARG = dict(x=0, wqkv=8, wo=16, wg=32, wu=40, wd=48, out=56, dbg=64, ws=72)
MB = 1 << 20

class Alloc:
    def __init__(self, start=1): self.n = start
    def __call__(self, cnt=1, align=1):
        self.n = (self.n + align - 1) // align * align
        r = self.n; self.n += cnt
        return r

def vr(b, n): return f"v[{b}:{b+n-1}]" if n > 1 else f"v{b}"
def sr(b, n): return f"s[{b}:{b+n-1}]" if n > 1 else f"s{b}"

def load_ptrs(k, names):
    for a, s in names:
        k(f"s_load_dwordx2 s[{s}:{s+1}], s[0:1], {ARG[a]}")

def srd(k, d, ptr, off, size, soff=None):
    if off:
        k(f"s_add_u32 s{d}, s{ptr}, {hex(off)}")
        k(f"s_addc_u32 s{d+1}, s{ptr+1}, 0")
    else:
        k(f"s_mov_b32 s{d}, s{ptr}")
        k(f"s_mov_b32 s{d+1}, s{ptr+1}")
    if soff is not None:
        k(f"s_add_u32 s{d}, s{d}, s{soff}")
        k(f"s_addc_u32 s{d+1}, s{d+1}, 0")
    k(f"s_mov_b32 s{d+2}, {hex(size)}")
    k(f"s_mov_b32 s{d+3}, 0x00020000")

def head(k, nwg, ptrs):
    k(f"s_cmp_ge_u32 s2, {nwg}")
    k(f"s_cbranch_scc1 {k.name}_end")
    k.nst = 0
    if STAMP:
        k("s_memrealtime s[94:95]")
        stamp(k)
    load_ptrs(k, ptrs)
    k("v_lshrrev_b32 v1, 6, v0")
    k("v_and_b32 v0, 63, v0")
    k("v_readfirstlane_b32 s3, v1")
    k("s_and_b32 s90, s2, 7")
    k("s_lshr_b32 s91, s2, 3")
    if STAMP:
        k("s_mov_b32 s93, s3")
        stamp(k)

import os
STAMP = int(os.environ.get("STAMP", "0"))
WS_STAMP = 0x3000000
ST = os.environ.get("ST", "sc1")
if ST: ST = " " + ST
STA = os.environ.get("STA", "sc1")
if STA: STA = " " + STA
KID = dict(ln1=0, csum=1, qkv=2, attn=3, wo=4, gu=5, down=6)
def stamp(k, i=None, real=False):
    if not STAMP: return
    if not real:
        i = k.nst; k.nst += 1
        assert i <= 8
    k(f"s_mem{'real' if real else ''}time s[{66+2*i}:{67+2*i}]")
    k("s_waitcnt lgkmcnt(0)")
def stamp_out(k, ws, n=None):
    if not STAMP: return
    stamp(k); stamp(k, 11, True)
    n = k.nst
    kid = KID[k.name[:-7]]
    k(f"s_add_u32 s84, s{ws}, {hex(WS_STAMP + kid * 0x100000)}")
    k(f"s_addc_u32 s85, s{ws+1}, 0")
    k("s_mov_b32 s86, 0x100000")
    k("s_mov_b32 s87, 0x00020000")
    k("s_lshl_b32 s92, s2, 3")
    k("s_add_u32 s92, s92, s93")
    k("s_lshl_b32 s92, s92, 6")
    k("s_mov_b64 exec, 1")
    k("v_mov_b32 v1, 0")
    for i in list(range(n)) + [9, 10, 11]:
        k({9: f"v_mov_b32 v2, {n}", 10: "v_mov_b32 v2, s94"}.get(i, f"v_mov_b32 v2, s{66+2*i}"))
        k(f"buffer_store_dword v2, v1, s[84:87], s92 offen offset:{4*i}")
    k("s_waitcnt vmcnt(0)")

def tail(k):
    k(f"{k.name}_end:")
    k("s_endpgm")

def tile_map_4x8(k, mb, nb):
    k(f"""
    s_lshr_b32 s{mb}, s90, 1
    s_lshl_b32 s{mb}, s{mb}, 2
    s_lshr_b32 s92, s91, 3
    s_add_u32 s{mb}, s{mb}, s92
    s_and_b32 s{nb}, s90, 1
    s_lshl_b32 s{nb}, s{nb}, 3
    s_and_b32 s92, s91, 7
    s_add_u32 s{nb}, s{nb}, s92
    """)

def xlane_sum(k, v, t, bits):
    for b in bits:
        if b == 0:
            k(f"v_add_f32_dpp v{v}, v{v}, v{v} quad_perm:[1,0,3,2] row_mask:0xf bank_mask:0xf")
        elif b == 1:
            k(f"v_add_f32_dpp v{v}, v{v}, v{v} quad_perm:[2,3,0,1] row_mask:0xf bank_mask:0xf")
        elif b == 2:
            k(f"v_add_f32_dpp v{v}, v{v}, v{v} row_half_mirror row_mask:0xf bank_mask:0xf")
        elif b == 3:
            k(f"v_add_f32_dpp v{v}, v{v}, v{v} row_ror:8 row_mask:0xf bank_mask:0xf")
        else:
            k(f"v_mov_b32 v{t}, v{v}")
            k(f"v_permlane{16 if b == 4 else 32}_swap_b32 v{v}, v{t}")
            k(f"v_add_f32 v{v}, v{v}, v{t}")

def k_ln1(prefetch=True):
    k = Kern("ln1_kernel", (256, 1, 1), (256, 1, 1), 512, vgpr=80)
    head(k, 256, [("x", 4), ("ws", 6), ("wqkv", 24), ("wo", 26)])
    k("""
    s_lshl_b32 s30, s90, 8
    s_lshl_b32 s31, s91, 3
    s_add_u32 s30, s30, s31
    v_and_b32 v1, 7, v0
    v_lshrrev_b32 v2, 3, v0
    v_add_u32 v3, s30, v1
    v_lshlrev_b32 v3, 11, v3
    v_lshlrev_b32 v4, 4, v2
    v_add_u32 v3, v3, v4
    s_lshl_b32 s31, s3, 9
    v_add_u32 v3, s31, v3
    s_waitcnt lgkmcnt(0)
    """)
    srd(k, 8, 4, 0, 4 * MB)
    srd(k, 12, 6, WS_XN, 4 * MB)
    for i in range(4):
        k(f"buffer_load_dwordx4 v[{8+4*i}:{11+4*i}], v3, s[8:11], 0 offen offset:{128*i}")
    srd(k, 20, 26, 0, 2 * MB)
    srd(k, 44, 6, WS_MU1, 0x8000)
    k("""
    s_lshl_b32 s36, s2, 2
    s_add_u32 s36, s36, s3
    s_lshl_b32 s37, s36, 11
    v_lshlrev_b32 v62, 5, v0
    buffer_load_dwordx4 v[68:71], v62, s[20:23], s37 offen
    buffer_load_dwordx4 v[72:75], v62, s[20:23], s37 offen offset:16
    """)
    npf = 2
    if prefetch:
        srd(k, 16, 24, 0, 6 * MB)
        k("""
        s_lshl_b32 s32, s91, 5
        s_lshl_b32 s33, s3, 3
        s_add_u32 s32, s32, s33
        s_mul_i32 s32, s32, 6144
        s_and_b32 s33, s90, 1
        s_lshl_b32 s33, s33, 10
        s_add_u32 s32, s32, s33
        v_lshlrev_b32 v5, 4, v0
        """)
        for i in range(8):
            for sec in range(3):
                k(f"s_add_u32 s33, s32, {i*6144 + sec*2048}")
                k(f"buffer_load_dwordx4 v[64:67], v5, s[16:19], s33 offen")
                npf += 1
    k("""
    s_lshr_b32 s31, s30, 5
    s_lshl_b32 s31, s31, 16
    s_lshl_b32 s34, s3, 14
    s_add_u32 s31, s31, s34
    s_and_b32 s34, s30, 31
    s_lshl_b32 s34, s34, 4
    s_add_u32 s31, s31, s34
    v_lshrrev_b32 v4, 4, v0
    v_lshlrev_b32 v4, 10, v4
    v_and_b32 v5, 1, v2
    v_lshlrev_b32 v5, 9, v5
    v_add_u32 v4, v4, v5
    v_lshlrev_b32 v5, 4, v1
    v_add_u32 v4, v4, v5
    v_add_u32 v4, s31, v4
    s_movk_i32 s40, 0x1000
    s_movk_i32 s41, 0x2000
    s_movk_i32 s42, 0x3000
    s_lshl_b32 s35, s3, 5
    v_lshlrev_b32 v6, 2, v1
    v_add_u32 v7, s35, v6
    """)
    k(f"s_waitcnt vmcnt({npf})")
    stamp(k)
    F = 24
    for i in range(16):
        k(f"v_lshlrev_b32 v{F+2*i}, 16, v{8+i}")
        k(f"v_and_b32 v{F+2*i+1}, 0xffff0000, v{8+i}")
    def tree(dst, op):
        k(f"v_add_f32 v{dst}, v{F}, v{F+1}") if op == "sum" else None
    k(f"v_add_f32 v56, v{F}, v{F+1}")
    k(f"v_add_f32 v57, v{F+2}, v{F+3}")
    for i in range(4, 32, 2):
        k(f"v_add_f32 v56, v56, v{F+i}")
        k(f"v_add_f32 v57, v57, v{F+i+1}")
    k("v_add_f32 v56, v56, v57")
    xlane_sum(k, 56, 57, (3, 4, 5))
    k("""
    ds_write_b32 v7, v56
    s_waitcnt lgkmcnt(0)
    s_barrier
    ds_read_b32 v58, v6
    ds_read_b32 v59, v6 offset:32
    ds_read_b32 v60, v6 offset:64
    ds_read_b32 v61, v6 offset:96
    s_waitcnt lgkmcnt(0)
    v_add_f32 v58, v58, v59
    v_add_f32 v60, v60, v61
    v_add_f32 v58, v58, v60
    v_mul_f32 v58, 0x3a800000, v58
    s_lshl_b32 s38, s30, 2
    v_cmp_gt_u32 vcc, 8, v0
    s_cmp_eq_u32 s3, 0
    s_cselect_b64 exec, vcc, 0
    buffer_store_dword v58, v6, s[44:47], s38 offen
    s_mov_b64 exec, -1
    """)
    for i in range(32):
        k(f"v_sub_f32 v{F+i}, v{F+i}, v58")
    k(f"v_mul_f32 v56, v{F}, v{F}")
    k(f"v_mul_f32 v57, v{F+1}, v{F+1}")
    for i in range(2, 32, 2):
        k(f"v_fmac_f32 v56, v{F+i}, v{F+i}")
        k(f"v_fmac_f32 v57, v{F+i+1}, v{F+i+1}")
    k("v_add_f32 v56, v56, v57")
    xlane_sum(k, 56, 57, (3, 4, 5))
    k("""
    ds_write_b32 v7, v56 offset:128
    s_waitcnt lgkmcnt(0)
    s_barrier
    ds_read_b32 v58, v6 offset:128
    ds_read_b32 v59, v6 offset:160
    ds_read_b32 v60, v6 offset:192
    ds_read_b32 v61, v6 offset:224
    s_waitcnt lgkmcnt(0)
    v_add_f32 v58, v58, v59
    v_add_f32 v60, v60, v61
    v_add_f32 v58, v58, v60
    v_mov_b32 v59, 0x3727c5ac
    v_fmac_f32 v59, 0x3a800000, v58
    v_rsq_f32 v59, v59
    """)
    for i in range(32):
        k(f"v_mul_f32 v{F+i}, v{F+i}, v59")
    for i in range(16):
        k(f"v_cvt_pk_bf16_f32 v{8+i}, v{F+2*i}, v{F+2*i+1}")
    for i, so in enumerate(("0", "s40", "s41", "s42")):
        k(f"buffer_store_dwordx4 v[{8+4*i}:{11+4*i}], v4, s[12:15], {so} offen")
    k(f"s_waitcnt vmcnt({npf - 2 + 5})")
    k("v_lshlrev_b32 v56, 16, v68")
    k("v_and_b32 v57, 0xffff0000, v68")
    for i in range(1, 8):
        k(f"v_lshlrev_b32 v58, 16, v{68+i}")
        k(f"v_and_b32 v59, 0xffff0000, v{68+i}")
        k("v_add_f32 v56, v56, v58")
        k("v_add_f32 v57, v57, v59")
    k("v_add_f32 v56, v56, v57")
    xlane_sum(k, 56, 57, (0, 1, 2, 3, 4, 5))
    k(f"""
    v_mul_f32 v56, 0x3a800000, v56
    s_lshl_b32 s36, s36, 2
    s_add_u32 s36, s36, {WS_RM - WS_MU1}
    v_mov_b32 v57, 0
    s_mov_b64 exec, 1
    buffer_store_dword v56, v57, s[44:47], s36 offen
    """)
    stamp(k)
    k("s_waitcnt vmcnt(0)")
    stamp_out(k, 6, 3)
    tail(k)
    return k

def csum_addr(k, wg_sgpr, wave="s3"):
    k(f"""
    s_and_b32 s50, {wg_sgpr}, 1
    s_lshr_b32 s52, {wg_sgpr}, 1
    s_and_b32 s52, s52, 15
    s_lshr_b32 s51, {wg_sgpr}, 5
    """)

def k_csum():
    k = Kern("csum_kernel", (224, 1, 1), (512, 1, 1), 16384, vgpr=64)
    head(k, 224, [("wg", 4), ("wu", 6), ("ws", 24)])
    csum_addr(k, "s2")
    k("""
    s_waitcnt lgkmcnt(0)
    s_cmp_eq_u32 s50, 0
    s_cselect_b32 s4, s4, s6
    s_cselect_b32 s5, s5, s7
    """)
    srd(k, 8, 4, 0, 7 * MB)
    srd(k, 12, 24, WS_CSUM, 2 * 3584 * 64)
    k("""
    s_lshl_b32 s53, s52, 6
    s_lshl_b32 s54, s3, 3
    s_add_u32 s53, s53, s54
    s_mul_i32 s53, s53, 7168
    s_lshl_b32 s54, s51, 10
    s_add_u32 s53, s53, s54
    v_lshlrev_b32 v1, 4, v0
    """)
    for i in range(8):
        k(f"s_add_u32 s54, s53, {i*7168}")
        k(f"buffer_load_dwordx4 v[{8+4*i}:{11+4*i}], v1, s[8:11], s54 offen")
    k("s_waitcnt vmcnt(0)")
    for e in range(4):
        k(f"v_lshlrev_b32 v{40+2*e}, 16, v{8+e}")
        k(f"v_and_b32 v{41+2*e}, 0xffff0000, v{8+e}")
    for i in range(1, 8):
        for e in range(4):
            k(f"v_lshlrev_b32 v48, 16, v{8+4*i+e}")
            k(f"v_and_b32 v49, 0xffff0000, v{8+4*i+e}")
            k(f"v_add_f32 v{40+2*e}, v{40+2*e}, v48")
            k(f"v_add_f32 v{41+2*e}, v{41+2*e}, v49")
    k("""
    s_lshl_b32 s54, s3, 11
    v_lshlrev_b32 v2, 5, v0
    v_add_u32 v2, s54, v2
    ds_write_b128 v2, v[40:43]
    ds_write_b128 v2, v[44:47] offset:16
    s_lshl_b32 s54, s3, 8
    v_lshlrev_b32 v3, 2, v0
    v_add_u32 v3, s54, v3
    s_waitcnt lgkmcnt(0)
    s_barrier
    """)
    for w in range(8):
        k(f"ds_read_b32 v{8+w}, v3 offset:{w*2048}")
    k("s_waitcnt lgkmcnt(0)")
    for w in range(1, 8):
        k(f"v_add_f32 v8, v8, v{8+w}")
    k("""
    s_mul_i32 s54, s50, 3584
    s_lshl_b32 s55, s51, 9
    s_add_u32 s54, s54, s55
    s_lshl_b32 s55, s3, 6
    s_add_u32 s54, s54, s55
    s_lshl_b32 s54, s54, 6
    s_lshl_b32 s55, s52, 2
    s_add_u32 s54, s54, s55
    v_lshlrev_b32 v4, 6, v0
    buffer_store_dword v8, v4, s[12:15], s54 offen
    s_waitcnt vmcnt(0)
    """)
    tail(k)
    return k

class Fifo:
    def __init__(self, k): self.k, self.q = k, []
    def issue(self, tag): self.q.append(tag)
    def need(self, tags):
        pos = [i for i, t in enumerate(self.q) if t in tags]
        if not pos: return
        younger = len(self.q) - 1 - max(pos)
        n = min(younger, 15)
        self.k(f"s_waitcnt lgkmcnt({n})")
        self.q = self.q[len(self.q) - n:] if n else []
    def drain(self):
        if self.q: self.k("s_waitcnt lgkmcnt(0)")
        self.q = []

class Gemm:
    def __init__(self, k, Mt, Nt, KK, G, S, nsteps, stage_bytes, acc, xf, wf, vXa, vWa, vXl, vWl,
                 xoff, woff, swap=lambda ni: False, dma=None, npieces=0, bpos=2, rpg=2, sRd=60, sCnt=61):
        self.__dict__.update(locals())
        self.fifo = Fifo(k)
        self.ng = KK // G
        assert KK % G == 0

    def reads(self, g, st):
        out = []
        for q in range(self.G):
            kk = g * self.G + q
            xs = [(f"ds_read_b128 {vr(self.xf[st] + 4*(q*self.Mt+mi), 4)}, v{self.vXa} offset:{self.xoff(mi, kk)}", ("x", st, q, mi)) for mi in range(self.Mt)]
            ws = []
            for ni in range(self.Nt):
                b = self.wf[st] + 4 * (q * self.Nt + ni)
                ws.append([(f"ds_read_b64_tr_b16 {vr(b + 2*j, 2)}, v{self.vWa} offset:{self.woff(ni, kk, j)}", ("w", st, q, ni)) for j in range(2)])
            out.append(xs[0]); out += ws[0]; out += xs[1:]
            for w in ws[1:]: out += w
        return out

    def mfmas(self, st):
        out = []
        for q in range(self.G):
            for ni in range(self.Nt):
                for mi in range(self.Mt):
                    a = vr(self.wf[st] + 4 * (q * self.Nt + ni), 4)
                    b = vr(self.xf[st] + 4 * (q * self.Mt + mi), 4)
                    if self.swap(ni): a, b = b, a
                    d = vr(self.acc(mi, ni), 16)
                    if os.environ.get("MF16"):
                        for h in range(2):
                            d = vr(self.acc(mi, ni) + 8*((st+q)&1) + 4*h, 4)
                            out.append((f"v_mfma_f32_16x16x32_bf16 {d}, {a}, {b}, {d}", {("x", st, q, mi), ("w", st, q, ni)}))
                        continue
                    out.append((f"v_mfma_f32_32x32x16_bf16 {d}, {a}, {b}, {d}", {("x", st, q, mi), ("w", st, q, ni)}))
        return out

    def advance_slot(self):
        k = self.k
        return [f"s_add_u32 s{self.sRd}, s{self.sRd}, {self.stage_bytes}",
                f"s_cmp_ge_u32 s{self.sRd}, {self.S*self.stage_bytes}",
                f"s_cselect_b32 s{self.sRd}, 0, s{self.sRd}",
                f"v_add_u32 v{self.vXa}, s{self.sRd}, v{self.vXl}",
                f"v_add_u32 v{self.vWa}, s{self.sRd}, v{self.vWl}"]

    def group(self, st, fillers, barrier=None):
        k = self.k
        ms = self.mfmas(st)
        fl = list(fillers)
        for i, (m, tags) in enumerate(ms):
            if barrier is not None and i == min(self.bpos, len(ms) - 1):
                for a, t in fl:
                    k(a)
                    if t: self.fifo.issue(t)
                self.fifo.drain()
                if barrier[0] is not None: k(f"s_waitcnt vmcnt({barrier[0]})")
                k("s_barrier")
                fl = list(barrier[1])
            self.fifo.need(tags)
            k(m)
            n = 0
            while fl and n < self.rpg:
                a, t = fl.pop(0)
                k(a)
                if t: self.fifo.issue(t); n += 1
                elif a.startswith("buffer"): n += 2
        for a, t in fl:
            k(a)
            if t: self.fifo.issue(t)

    def step(self, par, dma, vm, last=False, extra=False):
        for g in range(self.ng):
            st = (par + g) & 1
            if g < self.ng - 1:
                f = self.reads(g + 1, st ^ 1)
                if extra and g == 0: f = f + [(a, None) for a in self.dma()]
                if g == self.ng - 2 and not last: f = f + [(a, None) for a in self.advance_slot()]
                self.group(st, f)
            elif last:
                self.group(st, [])
            else:
                pre = [(a, None) for a in self.advance_slot()] if self.ng == 1 else []
                post = self.reads(0, st ^ 1)
                if dma:
                    d = [(a, None) for a in self.dma()]
                    post = post[:3] + d + post[3:] if False else post + d
                self.group(st, pre, barrier=(vm, post))
        return (par + self.ng) & 1

    def first_reads(self):
        for a, t in self.reads(0, 0):
            self.k(a); self.fifo.issue(t)

    def run(self):
        k, S, p = self.k, self.S, self.npieces
        stamp(k)
        self.first_reads()
        U = 2 if self.ng & 1 else 1
        n1 = (self.nsteps - S) if self.dma else (self.nsteps - 1)
        par = 0
        s = 0
        if self.dma:
            issued = 2
            while issued != s + S:
                issued += 1
                par = self.step(par, True, (issued - (s + 2)) * p, extra=True)
                issued += 1; s += 1
                assert issued <= s + S
        while (n1 - s) % U:
            par = self.step(par, True if self.dma else False, (S - 2) * p if self.dma else None); s += 1
        if n1 - s > 0:
            lab = k.label("loop")
            k(f"s_mov_b32 s{self.sCnt}, {(n1 - s)//U}")
            state = list(self.fifo.q)
            k(".p2align 4")
            k(f"{lab}:")
            for u in range(U):
                par = self.step(par, True if self.dma else False, (S - 2) * p if self.dma else None)
            assert [t for t in self.fifo.q] == state[len(state)-len(self.fifo.q):] or True
            k(f"s_sub_u32 s{self.sCnt}, s{self.sCnt}, 1")
            k(f"s_cmp_lg_u32 s{self.sCnt}, 0")
            k(f"s_cbranch_scc1 {lab}")
            self.fifo.q = list(state)
        for s in range(n1, self.nsteps):
            last = s == self.nsteps - 1
            vm = max(0, self.nsteps - 2 - s) * p if self.dma else None
            par = self.step(par, False, vm, last)
        stamp(k)

class Dma:
    def __init__(self, k, pieces, S, stage_bytes, steps, sWr=62):
        self.__dict__.update(locals())
        k(f"s_mov_b32 s64, {stage_bytes}")
        k(f"s_mov_b32 s65, {-(S-1)*stage_bytes}")
    def issue(self):
        out = []
        for (srd_, va, so, mb, mi) in self.pieces:
            out.append(f"s_add_u32 m0, s{mb}, {mi}")
            out.append("s_nop 0")
            out.append(f"buffer_load_dwordx4 v{va}, s[{srd_}:{srd_+3}], s{so} offen lds")
        if callable(self.steps): out += self.steps()
        else:
            for (so, inc) in self.steps:
                out.append(f"s_add_u32 s{so}, s{so}, {inc}")
        bases = sorted({p[3] for p in self.pieces})
        out.append(f"s_add_u32 s{self.sWr}, s{self.sWr}, 1")
        out.append(f"s_cmp_ge_u32 s{self.sWr}, {self.S}")
        out.append(f"s_cselect_b32 s{self.sWr}, 0, s{self.sWr}")
        out.append("s_cselect_b32 s63, s65, s64")
        for b in bases:
            out.append(f"s_add_u32 s{b}, s{b}, s63")
        return out

def loader_loop(k, dma, S, p, nsteps, sCnt=61, first=2):
    nst0 = k.nst
    stamp(k)
    for s in range(first):
        for a in dma.issue(): k(a)
    stamp(k)
    k(f"s_waitcnt vmcnt({(first-1)*p})")
    stamp(k)
    k("s_barrier")
    stamp(k)
    issued, s = first, 0
    def interval(s, issued):
        tgt = min(nsteps, s + S, issued + (1 if s == 0 else 2))
        for _ in range(issued, tgt):
            for a in dma.issue(): k(a)
        k(f"s_waitcnt vmcnt({(tgt - (s + 2)) * p})")
        k("s_barrier")
        return tgt
    while issued != s - 1 + S:
        issued = interval(s, issued); s += 1
    nloop = nsteps - issued
    lab = k.label("ld")
    k(f"s_mov_b32 s{sCnt}, {nloop}")
    k(f"{lab}:")
    interval(s, issued)
    k(f"s_sub_u32 s{sCnt}, s{sCnt}, 1")
    k(f"s_cmp_lg_u32 s{sCnt}, 0")
    k(f"s_cbranch_scc1 {lab}")
    s += nloop; issued = nsteps
    while s < nsteps - 1:
        interval(s, issued); s += 1
    stamp_out(k, 6)
    k("s_endpgm")
    k.nst = nst0

def w_lane_dma(k, dst, t1, t2, ldw):
    k(f"""
    v_lshrrev_b32 v{t1}, 5, v0
    v_lshlrev_b32 v{t1}, 2, v{t1}
    v_bfe_u32 v{t2}, v0, 2, 2
    v_add_u32 v{t1}, v{t1}, v{t2}
    s_mov_b32 s92, {ldw}
    v_mul_lo_u32 v{dst}, v{t1}, s92
    v_bfe_u32 v{t1}, v0, 4, 1
    v_lshlrev_b32 v{t1}, 6, v{t1}
    v_and_b32 v{t2}, 3, v0
    v_lshlrev_b32 v{t2}, 4, v{t2}
    v_add3_u32 v{dst}, v{dst}, v{t1}, v{t2}
    """)

def w_lane_read(k, dst, t1, t2, hi_stride, g_stride):
    k(f"""
    v_lshrrev_b32 v{t1}, 5, v0
    v_mul_u32_u24 v{dst}, {hi_stride}, v{t1}
    v_bfe_u32 v{t1}, v0, 2, 2
    v_lshlrev_b32 v{t1}, 6, v{t1}
    v_add_u32 v{dst}, v{dst}, v{t1}
    v_bfe_u32 v{t1}, v0, 4, 1
    v_mul_u32_u24 v{t1}, {g_stride}, v{t1}
    v_add_u32 v{dst}, v{dst}, v{t1}
    v_and_b32 v{t1}, 1, v0
    v_lshlrev_b32 v{t1}, 4, v{t1}
    v_bfe_u32 v{t2}, v0, 1, 1
    v_lshlrev_b32 v{t2}, 3, v{t2}
    v_add3_u32 v{dst}, v{dst}, v{t1}, v{t2}
    """)

def k_qkv(S=4, G=1, bpos=2, rpg=2):
    XB, WBY = 16384, 24576
    STG = XB + WBY
    k = Kern("qkv_kernel", (256, 1, 1), (512, 1, 1), S * STG, vgpr=256)
    head(k, 256, [("wqkv", 4), ("ws", 6)])
    tile_map_4x8(k, 30, 31)
    k("s_waitcnt lgkmcnt(0)")
    k("s_cmp_ge_u32 s3, 4")
    k(f"s_cbranch_scc0 qkv_comp")
    srd(k, 8, 6, WS_XN, 4 * MB)
    srd(k, 12, 4, 0, 6 * MB)
    k("s_sub_u32 s3, s3, 4")
    k("""
    s_lshl_b32 s32, s30, 2
    s_add_u32 s32, s32, s3
    s_lshl_b32 s32, s32, 16
    v_lshlrev_b32 v1, 4, v0
    v_add_u32 v1, s32, v1
    """)
    for i in range(4): k(f"v_add_u32 v{8+i}, {i*1024}, v1")
    w_lane_dma(k, 2, 3, 4, 6144)
    k("""
    s_mul_i32 s33, s3, 16*6144
    s_lshl_b32 s34, s31, 7
    s_add_u32 s33, s33, s34
    v_add_u32 v2, s33, v2
    """)
    for i in range(6): k(f"v_add_u32 v{12+i}, {(i//3)*8*6144 + (i%3)*2048}, v2")
    if os.environ.get("WLIN"):
        k("s_mul_i32 s33, s31, 16*24576\ns_mul_i32 s34, s3, 6144\ns_add_u32 s33, s33, s34\nv_lshlrev_b32 v2, 4, v0\nv_add_u32 v2, s33, v2")
        for i in range(6): k(f"v_add_u32 v{12+i}, {i*1024}, v2")
    k(f"""
    s_mov_b32 s40, 0
    s_mov_b32 s41, 0
    s_lshl_b32 s42, s3, 12
    s_mul_i32 s43, s3, 6144
    s_add_u32 s43, s43, {XB}
    s_mov_b32 s62, 0
    """)
    pieces = [(8, 8+i, 40, 42, i*1024) for i in range(4)] + [(12, 12+i, 41, 43, i*1024) for i in range(6)]
    dma = Dma(k, pieces, S, STG, [(40, 4096), (41, 24576 if os.environ.get('WLIN') else 64*6144)])
    loader_loop(k, dma, S, 10, 16)
    k("qkv_comp:")
    al = Alloc(8)
    acc0 = al(96, 4)
    xf = [al(8*G, 4), al(8*G, 4)]
    wf = [al(12*G, 4), al(12*G, 4)]
    vXa, vWa, vXl, vWl, vO = al(), al(), al(), al(), al()
    k.vgpr = al.n
    srd(k, 8, 6, WS_Q, 12 * MB)
    k(f"""
    s_lshr_b32 s32, s3, 1
    s_and_b32 s33, s3, 1
    s_lshl_b32 s34, s32, 13
    v_lshlrev_b32 v{vO}, 4, v0
    v_add_u32 v{vXl}, s34, v{vO}
    """)
    w_lane_read(k, vWl, 2, 3, 3072, 32)
    k(f"""
    s_lshl_b32 s34, s33, 8
    s_add_u32 s34, s34, {XB}
    v_add_u32 v{vWl}, s34, v{vWl}
    v_mov_b32 v{vXa}, v{vXl}
    v_mov_b32 v{vWa}, v{vWl}
    s_mov_b32 s60, 0
    """)
    for i in range(96): k(f"v_mov_b32 v{acc0+i}, 0")
    k(f"""
    s_lshl_b32 s34, s31, 1
    s_add_u32 s34, s34, s33
    s_lshl_b32 s34, s34, 17
    s_lshl_b32 s35, s30, 2
    s_lshl_b32 s36, s32, 1
    s_add_u32 s35, s35, s36
    s_lshl_b32 s35, s35, 11
    s_add_u32 s34, s34, s35
    s_add_u32 s35, s34, {4*MB}
    s_add_u32 s36, s34, {8*MB}
    s_barrier
    """)
    g = Gemm(k, 2, 3, 4, G, S, 16, STG, lambda mi, ni: acc0 + 16*(mi*3+ni), xf, wf, vXa, vWa, vXl, vWl,
             xoff=lambda mi, kk: mi*4096 + kk*1024,
             woff=lambda ni, kk, j: kk*6144 + ni*1024 + j*512,
             swap=lambda ni: ni == 2, bpos=bpos, rpg=rpg)
    g.run()
    qs = math.log2(math.e) / math.sqrt(32.0)
    import struct
    k(f"s_mov_b32 s37, {hex(struct.unpack('<I', struct.pack('<f', qs))[0])}")
    for ni in (1, 2, 0):
        for mi in range(2):
            a = acc0 + 16*(mi*3+ni)
            if ni == 0:
                for r in range(16): k(f"v_mul_f32 v{a+r}, s37, v{a+r}")
            for r in range(8): k(f"v_cvt_pk_bf16_f32 v{a+r}, v{a+2*r}, v{a+2*r+1}")
            for j in range(2):
                k(f"buffer_store_dwordx4 {vr(a+4*j, 4)}, v{vO}, s[8:11], s{34+ni} offen offset:{mi*2048 + j*1024}{ST}")
    if STAMP: stamp(k); k("s_waitcnt vmcnt(0)"); stamp_out(k, 6, 4)
    tail(k)
    return k

def k_n64(name, K, wname, xoff_ws, S=6, G=4, bpos=0, rpg=3):
    XB, WBY = 16384, 8192
    STG = XB + WBY
    nsteps = K // 64
    is_wo = name == "wo"
    k = Kern(name + "_kernel", (256, 1, 1), (512, 1, 1), S * STG, vgpr=256)
    head(k, 256, [(wname, 4), ("ws", 6), ("x" if is_wo else "out", 24)])
    tile_map_4x8(k, 30, 31)
    k("s_waitcnt lgkmcnt(0)")
    k("s_cmp_ge_u32 s3, 4")
    k(f"s_cbranch_scc0 {name}_comp")
    srd(k, 8, 6, xoff_ws, 2048 * K * 2)
    srd(k, 12, 4, 0, K * 2048)
    k("s_sub_u32 s3, s3, 4")
    k(f"""
    s_lshl_b32 s32, s30, 2
    s_add_u32 s32, s32, s3
    s_mul_i32 s32, s32, {K//16*1024}
    v_lshlrev_b32 v1, 4, v0
    v_add_u32 v1, s32, v1
    """)
    for i in range(4): k(f"v_add_u32 v{8+i}, {i*1024}, v1")
    w_lane_dma(k, 2, 3, 4, 2048)
    k("""
    s_lshl_b32 s33, s3, 15
    s_lshl_b32 s34, s31, 7
    s_add_u32 s33, s33, s34
    v_add_u32 v12, s33, v2
    v_add_u32 v13, 8*2048, v12
    """)
    if os.environ.get("WLIN"):
        k("s_mul_i32 s33, s31, 16*8192\ns_lshl_b32 s34, s3, 11\ns_add_u32 s33, s33, s34\nv_lshlrev_b32 v2, 4, v0\nv_add_u32 v12, s33, v2\nv_add_u32 v13, 1024, v12")
    k(f"""
    s_mov_b32 s40, 0
    s_mov_b32 s41, 0
    s_lshl_b32 s42, s3, 12
    s_lshl_b32 s43, s3, 11
    s_add_u32 s43, s43, {XB}
    s_mov_b32 s62, 0
    """)
    pieces = [(8, 8+i, 40, 42, i*1024) for i in range(4)] + [(12, 12+i, 41, 43, i*1024) for i in range(2)]
    dma = Dma(k, pieces, S, STG, [(40, 4096), (41, 8192 if os.environ.get('WLIN') else 64*2048)])
    loader_loop(k, dma, S, 6, nsteps)
    k(f"{name}_comp:")
    al = Alloc(8)
    acc0 = al(32, 4)
    xf = [al(4*G, 4), al(4*G, 4)]
    wf = [al(8*G, 4), al(8*G, 4)]
    res = al(16, 4)
    mup = al(17, 4) if is_wo else None
    vXa, vWa, vXl, vWl, vT, vR = al(), al(), al(), al(), al(), al()
    k.vgpr = al.n
    k(f"""
    s_lshl_b32 s32, s30, 2
    s_add_u32 s32, s32, s3
    v_lshlrev_b32 v{vT}, 4, v0
    """)
    k(f"""
    v_and_b32 v2, 31, v0
    v_lshlrev_b32 v2, 11, v2
    v_lshrrev_b32 v3, 5, v0
    v_lshlrev_b32 v3, 4, v3
    v_add_u32 v{vR}, v2, v3
    s_lshl_b32 s33, s32, 16
    s_lshl_b32 s34, s31, 7
    s_add_u32 s33, s33, s34
    """)
    k(f"""
    s_lshl_b32 s34, s32, 6
    s_lshl_b32 s35, s31, 2
    s_add_u32 s34, s34, s35
    s_lshl_b32 s34, s34, 10
    """)
    srd(k, 8, 24, 0, 4 * MB)
    srd(k, 12, 6, WS_H, 4 * MB)
    for q in range(4):
        if is_wo: k(f"buffer_load_dwordx4 {vr(res+4*q, 4)}, v{vR}, s[8:11], s33 offen offset:{q*32}")
        else:     k(f"buffer_load_dwordx4 {vr(res+4*q, 4)}, v{vT}, s[12:15], s34 offen offset:{q*1024}")
    if is_wo:
        srd(k, 16, 6, WS_MU1, 0x10000 + 0x40000)
        k(f"""
        s_lshl_b32 s35, s32, 12
        s_add_u32 s35, s35, {WS_MUP - WS_MU1}
        s_lshl_b32 s36, s32, 7
        v_and_b32 v2, 31, v0
        v_lshlrev_b32 v2, 2, v2
        """)
        for q in range(4):
            k(f"buffer_load_dwordx4 {vr(mup+4*q, 4)}, v{vT}, s[16:19], s35 offen offset:{q*1024}")
        k(f"buffer_load_dword v{mup+16}, v2, s[16:19], s36 offen")
    k(f"""
    s_lshl_b32 s35, s3, 12
    v_add_u32 v{vXl}, s35, v{vT}
    """)
    w_lane_read(k, vWl, 2, 3, 1024, 32)
    k(f"""
    v_add_u32 v{vWl}, {XB}, v{vWl}
    v_mov_b32 v{vXa}, v{vXl}
    v_mov_b32 v{vWa}, v{vWl}
    s_mov_b32 s60, 0
    """)
    for i in range(32): k(f"v_mov_b32 v{acc0+i}, 0")
    k("s_barrier")
    g = Gemm(k, 1, 2, 4, G, S, nsteps, STG, lambda mi, ni: acc0 + 16*ni, xf, wf, vXa, vWa, vXl, vWl,
             xoff=lambda mi, kk: kk*1024,
             woff=lambda ni, kk, j: kk*2048 + j*512 + ni*256, bpos=bpos, rpg=rpg)
    g.run()
    k("s_waitcnt vmcnt(0)")
    T = xf[0]
    if is_wo:
        for i in range(1, 16): k(f"v_add_f32 v{mup}, v{mup}, v{mup+i}")
        xlane_sum(k, mup, 4, (5,))
        k(f"v_add_f32 v{mup}, v{mup}, v{mup+16}")
    for i in range(16):
        k(f"v_lshlrev_b32 v{T+(2*i)%8}, 16, v{res+i}")
        k(f"v_and_b32 v{T+(2*i+1)%8}, 0xffff0000, v{res+i}")
        k(f"v_add_f32 v{acc0+2*i}, v{acc0+2*i}, v{T+(2*i)%8}")
        k(f"v_add_f32 v{acc0+2*i+1}, v{acc0+2*i+1}, v{T+(2*i+1)%8}")
        k(f"v_cvt_pk_bf16_f32 v{res+i}, v{acc0+2*i}, v{acc0+2*i+1}")
        if i % 4 == 3:
            q = i // 4
            if is_wo: k(f"buffer_store_dwordx4 {vr(res+4*q, 4)}, v{vT}, s[12:15], s34 offen offset:{q*1024}{ST}")
            else:     k(f"buffer_store_dwordx4 {vr(res+4*q, 4)}, v{vR}, s[8:11], s33 offen offset:{q*32}")
    if is_wo:
        srd(k, 8, 6, WS_HC, 4 * MB)
        srd(k, 16, 6, WS_STAT, 64 * 2048)
        H2 = wf[0]
        for i in range(32): k(f"v_sub_f32 v{acc0+i}, v{acc0+i}, v{mup}")
        k(f"v_mul_f32 v2, v{acc0}, v{acc0}")
        k(f"v_mul_f32 v3, v{acc0+1}, v{acc0+1}")
        for i in range(16):
            k(f"v_cvt_pk_bf16_f32 v{H2+i}, v{acc0+2*i}, v{acc0+2*i+1}")
            if i:
                k(f"v_fmac_f32 v2, v{acc0+2*i}, v{acc0+2*i}")
                k(f"v_fmac_f32 v3, v{acc0+2*i+1}, v{acc0+2*i+1}")
            if i % 4 == 3:
                k(f"buffer_store_dwordx4 {vr(H2+i-3, 4)}, v{vT}, s[8:11], s34 offen offset:{(i//4)*1024}{ST}")
        k("v_add_f32 v2, v2, v3")
        xlane_sum(k, 2, 4, (5,))
        k(f"""
        s_lshl_b32 s35, s32, 11
        s_lshr_b32 s36, s31, 2
        s_lshl_b32 s36, s36, 9
        s_add_u32 s35, s35, s36
        s_and_b32 s36, s31, 3
        s_lshl_b32 s36, s36, 2
        s_add_u32 s35, s35, s36
        s_mov_b32 exec_hi, 0
        buffer_store_dword v2, v{vT}, s[16:19], s35 offen
        """)
    if STAMP: stamp(k); k("s_waitcnt vmcnt(0)"); stamp_out(k, 6, 4)
    tail(k)
    return k

def win_order(split, m0, m1, sh):
    def adv():
        o = ["s_add_u32 s58, s58, 1", "s_add_u32 s56, s58, s59"]
        if split is not None:
            o += [f"s_cmp_lt_u32 s58, {split}", f"s_cselect_b32 s57, {m0}, {m1}",
                  "s_and_b32 s56, s56, s57", "s_andn2_b32 s57, s58, s57"]
        else:
            o += [f"s_and_b32 s56, s56, {m0}", f"s_andn2_b32 s57, s58, {m0}"]
        o.append("s_or_b32 s56, s56, s57")
        for r, x in sh:
            o.append(f"s_mul_i32 s{r}, s56, {x[1]}" if isinstance(x, tuple) else f"s_lshl_b32 s{r}, s56, {x}")
        return o
    return adv

def k_down2(S=5, G=2, bpos=0, rpg=3, rot=True):
    XB, WBY = 16384, 16384
    STG = XB + WBY
    nsteps = 28
    name = "down"
    k = Kern(name + "_kernel", (256, 1, 1), (512, 1, 1), S * STG, vgpr=256)
    head(k, 256, [("wd", 4), ("ws", 6), ("out", 24)])
    k("""
    s_lshr_b32 s30, s90, 1
    s_lshl_b32 s30, s30, 2
    s_lshr_b32 s92, s91, 3
    s_add_u32 s30, s30, s92
    s_and_b32 s31, s91, 7
    s_and_b32 s29, s90, 1
    s_waitcnt lgkmcnt(0)
    s_cmp_ge_u32 s3, 4
    s_cbranch_scc0 down_comp
    """)
    srd(k, 8, 6, WS_ACT, 14 * MB)
    srd(k, 12, 4, 0, 7 * MB)
    k(f"""
    s_sub_u32 s3, s3, 4
    s_xor_b32 s32, s3, s29
    s_xor_b32 s32, s32, 1
    s_lshl_b32 s33, s30, 2
    s_add_u32 s32, s32, s33
    s_mul_i32 s32, s32, {224*1024}
    s_mul_i32 s33, s29, {112*1024}
    s_add_u32 s32, s32, s33
    v_lshlrev_b32 v1, 4, v0
    v_add_u32 v8, s32, v1
    """)
    for i in range(1, 4): k(f"v_add_u32 v{8+i}, {i*1024}, v8")
    w_lane_dma(k, 2, 3, 4, 2048)
    k(f"""
    s_lshl_b32 s33, s3, 15
    s_lshl_b32 s34, s31, 8
    s_add_u32 s33, s33, s34
    s_mul_i32 s34, s29, {1792*2048}
    s_add_u32 s33, s33, s34
    v_add_u32 v12, s33, v2
    v_add_u32 v13, 8*2048, v12
    v_add_u32 v14, 128, v12
    v_add_u32 v15, 128, v13
    s_lshl_b32 s59, s92, 1
    s_add_u32 s59, s59, s31
    s_mov_b32 s58, 0
    s_and_b32 s56, s59, {7 if rot else 0}
    s_lshl_b32 s40, s56, 12
    s_lshl_b32 s41, s56, 17
    s_lshl_b32 s42, s3, 12
    s_lshl_b32 s43, s3, 11
    s_add_u32 s43, s43, {XB}
    s_mov_b32 s62, 0
    """)
    if os.environ.get("WLIN"):
        k("s_lshl_b32 s33, s31, 1\ns_add_u32 s33, s33, s29\ns_mul_i32 s33, s33, 28*16384\ns_lshl_b32 s34, s3, 12\ns_add_u32 s33, s33, s34\nv_lshlrev_b32 v2, 4, v0\nv_add_u32 v12, s33, v2\nv_add_u32 v13, 1024, v12\nv_add_u32 v14, 2048, v12\nv_add_u32 v15, 3072, v12")
    pieces = [(8, 8+i, 40, 42, i*1024) for i in range(4)] + [(12, 12+i, 41, 43, (i&1)*1024 + (i>>1)*8192) for i in range(4)]
    dma = Dma(k, pieces, S, STG, win_order(24, 7, 3, [(40, 12), (41, 17)]) if rot else [(40, 4096), (41, 16384 if os.environ.get('WLIN') else 64*2048)])
    if os.environ.get('NOADV'): dma.steps = []
    if os.environ.get('XROT'):
        k(f"""
        s_lshr_b32 s58, s90, 1
        s_mul_i32 s58, s58, 7
        s_lshl_b32 s40, s58, 12
        s_lshl_b32 s41, s58, {14 if os.environ.get('WLIN') else 17}
        """)
        dma.steps = lambda: ["s_add_u32 s58, s58, 1", "s_cmp_eq_u32 s58, 28", "s_cselect_b32 s58, 0, s58",
                             "s_lshl_b32 s40, s58, 12", f"s_lshl_b32 s41, s58, {14 if os.environ.get('WLIN') else 17}"]
    if os.environ.get('WRAP'):
        w = os.environ['WRAP']
        dma.steps = lambda: ["s_add_u32 s40, s40, 4096", "s_add_u32 s41, s41, 64*2048"] + (["s_and_b32 s40, s40, 0x3fff"] if 'x' in w else []) + (["s_and_b32 s41, s41, 0x7ffff"] if 'w' in w else [])
    if os.environ.get('HALFDMA'): dma.pieces = pieces[:4]
    loader_loop(k, dma, S, len(dma.pieces), nsteps)
    k("down_comp:")
    al = Alloc(8)
    acc0 = al(64, 4)
    xf = [al(8*G, 4), al(8*G, 4)]
    wf = [al(8*G, 4), al(8*G, 4)]
    res = al(16, 4)
    rx = al(32, 4)
    vXa, vWa, vXl, vWl, vT, vR = al(), al(), al(), al(), al(), al()
    k.vgpr = al.n
    k(f"""
    s_lshr_b32 s32, s3, 1
    s_and_b32 s33, s3, 1
    s_lshl_b32 s34, s30, 2
    s_lshl_b32 s35, s32, 1
    s_add_u32 s34, s34, s35
    s_add_u32 s34, s34, s29
    v_lshlrev_b32 v{vT}, 4, v0
    s_lshl_b32 s35, s34, 6
    s_lshl_b32 s36, s31, 3
    s_add_u32 s35, s35, s36
    s_lshl_b32 s36, s33, 2
    s_add_u32 s35, s35, s36
    s_lshl_b32 s35, s35, 10
    """)
    srd(k, 12, 6, WS_H, 4 * MB)
    for q in range(4):
        k(f"buffer_load_dwordx4 {vr(res+4*q, 4)}, v{vT}, s[12:15], s35 offen offset:{q*1024}")
    srd(k, 8, 24, 0, 4 * MB)
    srd(k, 16, 6, WS_EX, 8 * MB)
    k(f"""
    v_and_b32 v2, 31, v0
    v_lshlrev_b32 v2, 11, v2
    v_lshrrev_b32 v3, 5, v0
    v_lshlrev_b32 v3, 4, v3
    v_add_u32 v{vR}, v2, v3
    s_lshl_b32 s34, s34, 16
    s_lshl_b32 s36, s31, 8
    s_add_u32 s34, s34, s36
    s_lshl_b32 s36, s33, 7
    s_add_u32 s34, s34, s36
    s_lshl_b32 s36, s2, 2
    s_add_u32 s36, s36, s3
    s_lshl_b32 s36, s36, 13
    s_xor_b32 s37, s36, 0x8000
    s_add_u32 s38, s36, 4096
    s_add_u32 s39, s37, 4096
    s_lshl_b32 s32, s32, 13
    v_add_u32 v{vXl}, s32, v{vT}
    """)
    w_lane_read(k, vWl, 2, 3, 1024, 32)
    k(f"""
    s_lshl_b32 s33, s33, 13
    s_add_u32 s33, s33, {XB}
    v_add_u32 v{vWl}, s33, v{vWl}
    v_mov_b32 v{vXa}, v{vXl}
    v_mov_b32 v{vWa}, v{vWl}
    s_mov_b32 s60, 0
    """)
    for i in range(64): k(f"v_mov_b32 v{acc0+i}, 0")
    k("s_barrier")
    g = Gemm(k, 2, 2, 4, G, S, nsteps, STG, lambda mi, ni: acc0 + 32*mi + 16*ni, xf, wf, vXa, vWa, vXl, vWl,
             xoff=lambda mi, kk: mi*4096 + kk*1024,
             woff=lambda ni, kk, j: kk*2048 + j*512 + ni*256, bpos=bpos, rpg=rpg)
    g.run()
    for q in range(8):
        k(f"buffer_store_dwordx4 {vr(acc0+4*q, 4)}, v{vT}, s[16:19], s{36 if q < 4 else 38} offen offset:{(q&3)*1024} sc1")
    k(f"""
    s_movk_i32 s40, 0x4000
    down_poll:
    buffer_load_dword v2, v{vT}, s[16:19], s39 offen offset:3084 sc1
    s_waitcnt vmcnt(0)
    v_cmp_eq_u32 vcc, -1, v2
    s_sub_u32 s40, s40, 1
    s_cselect_b64 vcc, 0, vcc
    s_nop 0
    s_cbranch_vccnz down_poll
    s_max_i32 s40, s40, 0
    """)
    for q in range(8):
        k(f"buffer_load_dwordx4 {vr(rx+4*q, 4)}, v{vT}, s[16:19], s{37 if q < 4 else 39} offen offset:{(q&3)*1024} sc1")
    T = xf[0]
    A = acc0 + 32
    k("s_waitcnt vmcnt(0)")
    k(f"v_max3_u32 v2, v{rx}, v{rx+1}, v{rx+2}")
    k(f"v_max3_u32 v3, v{rx+3}, v{rx+4}, v{rx+5}")
    for i in range(6, 30, 4):
        k(f"v_max3_u32 v2, v{rx+i}, v{rx+i+1}, v2")
        k(f"v_max3_u32 v3, v{rx+i+2}, v{rx+i+3}, v3")
    k(f"v_max3_u32 v2, v{rx+30}, v{rx+31}, v2")
    k(f"""
    v_max_u32 v2, v2, v3
    v_cmp_eq_u32 vcc, -1, v2
    s_sub_u32 s40, s40, 1
    s_cselect_b64 vcc, 0, vcc
    s_nop 0
    s_cbranch_vccnz down_poll
    """)
    stamp(k)
    for i in range(16):
        k(f"v_lshlrev_b32 v{T+(2*i)%8}, 16, v{res+i}")
        k(f"v_and_b32 v{T+(2*i+1)%8}, 0xffff0000, v{res+i}")
        k(f"v_add_f32 v{A+2*i}, v{A+2*i}, v{rx+2*i}")
        k(f"v_add_f32 v{A+2*i+1}, v{A+2*i+1}, v{rx+2*i+1}")
        k(f"v_add_f32 v{A+2*i}, v{A+2*i}, v{T+(2*i)%8}")
        k(f"v_add_f32 v{A+2*i+1}, v{A+2*i+1}, v{T+(2*i+1)%8}")
        k(f"v_cvt_pk_bf16_f32 v{res+i}, v{A+2*i}, v{A+2*i+1}")
        if i % 4 == 3:
            q = i // 4
            k(f"buffer_store_dwordx4 {vr(res+4*q, 4)}, v{vR}, s[8:11], s34 offen offset:{q*32}")
    if STAMP: stamp(k); k("s_waitcnt vmcnt(0)"); stamp_out(k, 6, 4)
    tail(k)
    return k

def k_gu(S=5, bpos=2, rpg=2):
    XB = 16384
    GOFF = XB
    UOFF = XB + 7168 + 32
    STG = XB + 14336 + 256
    k = Kern("gu_kernel", (256, 1, 1), (512, 1, 1), S * STG, vgpr=256)
    head(k, 256, [("wg", 4), ("wu", 6), ("ws", 24)])
    k("""
    s_and_b32 s30, s90, 6
    s_lshr_b32 s92, s91, 4
    s_add_u32 s30, s30, s92
    s_and_b32 s31, s90, 1
    s_lshl_b32 s31, s31, 4
    s_and_b32 s92, s91, 15
    s_add_u32 s31, s31, s92
    """ if os.environ.get("GUMAP") == "P" else """
    s_and_b32 s30, s90, 1
    s_lshl_b32 s30, s30, 2
    s_lshr_b32 s92, s91, 3
    s_add_u32 s30, s30, s92
    s_lshr_b32 s31, s90, 1
    s_lshl_b32 s31, s31, 3
    s_and_b32 s92, s91, 7
    s_add_u32 s31, s31, s92
    """)
    k("""
    s_and_b32 s32, s3, 3
    s_mul_i32 s33, s31, 112
    s_and_b32 s34, s31, 1
    s_lshl_b32 s35, s34, 4
    s_add_u32 s35, s35, s33
    s_cmp_eq_u32 s34, 0
    s_cselect_b32 s36, 96, 0
    s_add_u32 s36, s36, s33
    s_waitcnt lgkmcnt(0)
    """)
    srd(k, 8, 24, WS_HC, 4 * MB)
    srd(k, 16, 24, WS_STAT, 64 * 2048)
    al = Alloc(8)
    acc0 = al(128, 4)
    xf = [al(8, 4), al(8, 4)]
    wf = [al(16, 4), al(16, 4)]
    vXa, vWa, vXl, vWl, vT = al(), al(), al(), al(), al()
    vD = al(5)
    vS = al(4)
    k.vgpr = al.n
    k(f"v_lshlrev_b32 v{vT}, 4, v0")
    k(f"""
    s_lshl_b32 s37, s30, 3
    s_lshl_b32 s38, s32, 1
    s_add_u32 s37, s37, s38
    s_lshl_b32 s38, s37, 11
    s_cmp_ge_u32 s3, 4
    s_cbranch_scc1 gu_b
    """)
    def path(isB):
        Nt = 3 if isB else 4
        t0 = 4 if isB else 0
        k.nst = 2
        if not isB:
            for i in range(3):
                k(f"""
                s_mul_i32 s44, s3, 3
                s_add_u32 s44, s44, {i}
                s_lshr_b32 s45, s44, 1
                s_and_b32 s44, s44, 1
                s_lshl_b32 s46, s30, 3
                s_add_u32 s45, s45, s46
                s_lshl_b32 s45, s45, 16
                s_lshl_b32 s44, s44, 10
                s_add_u32 s45, s45, s44
                v_add_u32 v{vD+i}, s45, v{vT}
                """)
            k("s_mul_i32 s42, s3, 3072")
            pieces = [(8, vD+i, 40, 42, i*1024) for i in range(3)]
            steps = [(40, 2048)]
            npc = 3
        else:
            k(f"""
            s_add_u32 s44, s32, 12
            s_lshr_b32 s45, s44, 1
            s_and_b32 s44, s44, 1
            s_lshl_b32 s46, s30, 3
            s_add_u32 s45, s45, s46
            s_lshl_b32 s45, s45, 16
            s_lshl_b32 s44, s44, 10
            s_add_u32 s45, s45, s44
            v_add_u32 v{vD}, s45, v{vT}
            s_add_u32 s42, s32, 12
            s_lshl_b32 s42, s42, 10
            s_cmp_ge_u32 s32, 2
            s_cselect_b32 s4, s6, s4
            s_cselect_b32 s5, s7, s5
            s_cselect_b32 s43, {UOFF-GOFF}, 0
            s_add_u32 s43, s43, {GOFF}
            s_and_b32 s47, s32, 1
            s_lshl_b32 s44, s47, 12
            s_add_u32 s43, s43, s44
            s_lshl_b32 s46, s47, 8
            """)
            srd(k, 12, 4, 0, 7 * MB)
            for i in range(4):
                d = vD + 1 + i
                k(f"""
                v_add_u32 v4, s46, v0
                v_add_u32 v4, {64*i}, v4
                v_mul_u32_u24 v5, 586, v4
                v_lshrrev_b32 v5, 16, v5
                v_mul_u32_u24 v6, 112, v5
                v_sub_u32 v4, v4, v6
                v_lshlrev_b32 v5, 3, v5
                v_bfe_u32 v6, v4, 2, 2
                v_add_u32 v5, v5, v6
                v_lshrrev_b32 v6, 4, v4
                v_and_b32 v4, 3, v4
                v_cmp_le_u32 vcc, 3, v6
                v_cndmask_b32 v7, 0, 1, vcc
                v_mul_u32_u24 v1, 3, v7
                v_sub_u32 v1, v6, v1
                v_lshlrev_b32 v1, 2, v1
                v_add_u32 v1, v1, v4
                v_lshlrev_b32 v1, 3, v1
                v_add_u32 v1, s35, v1
                v_cmp_eq_u32 vcc, 6, v6
                v_lshrrev_b32 v6, 1, v4
                v_cndmask_b32 v7, v7, v6, vcc
                v_and_b32 v4, 1, v4
                v_lshlrev_b32 v4, 3, v4
                v_add_u32 v4, s36, v4
                v_cndmask_b32 v1, v1, v4, vcc
                v_lshlrev_b32 v7, 2, v7
                v_add_u32 v5, v5, v7
                v_mul_u32_u24 v5, 7168, v5
                v_lshlrev_b32 v1, 1, v1
                v_add_u32 v{d}, v5, v1
                """)
            k(f"""
            s_cmp_eq_u32 s47, 0
            s_cselect_b32 s48, 0, 0x40000000
            v_add_u32 v{vD+4}, s48, v{vD+4}
            s_cselect_b32 s49, s43, {S*STG - 3072}
            """)
            pieces = [(8, vD, 40, 42, 0)] + [(12, vD+1+i, 41, 43, i*1024) for i in range(3)] + [(12, vD+4, 41, 49, 3072)]
            steps = [(40, 2048), (41, 32*7168)]
            npc = 5
        k("s_mov_b32 s40, 0\ns_mov_b32 s41, 0\ns_mov_b32 s62, 0\ns_mov_b32 s60, 0")
        dma = Dma(k, pieces, S, STG, steps)
        if isB:
            iss0 = dma.issue
            def iss():
                o = iss0()
                o.append("s_cmp_eq_u32 s47, 0")
                o.append(f"s_cselect_b32 s49, s43, {S*STG - 3072}")
                return o
            dma.issue = iss
        stamp(k)
        for s in range(2):
            for a in dma.issue(): k(a)
        for q in range(4):
            k(f"buffer_load_dwordx4 {vr(wf[1] + 4*q, 4)}, v{vT}, s[16:19], s38 offen offset:{q*1024}")
        stamp(k)
        k(f"""
        s_lshl_b32 s44, s32, 12
        v_add_u32 v{vXl}, s44, v{vT}
        """)
        w_lane_read(k, vWl, 4, 5, 1792, UOFF - GOFF)
        k(f"""
        v_add_u32 v{vWl}, {GOFF}, v{vWl}
        v_mov_b32 v{vXa}, v{vXl}
        v_mov_b32 v{vWa}, v{vWl}
        """)
        for i in range(32 * Nt): k(f"v_mov_b32 v{acc0+i}, 0")
        k("s_waitcnt vmcnt(0)")
        for mi in range(2):
            a = wf[1] + 8 * mi
            for q in range(1, 8): k(f"v_add_f32 v{a}, v{a}, v{a+q}")
            xlane_sum(k, a, 4, (5,))
            k(f"""
            v_mov_b32 v{vS+2*mi+1}, 0x3727c5ac
            v_fmac_f32 v{vS+2*mi+1}, 0x3a800000, v{a}
            v_rsq_f32 v{vS+2*mi}, v{vS+2*mi+1}
            v_mul_f32 v{vS+2*mi}, 0xbfb8aa3b, v{vS+2*mi}
            """)
        stamp(k)
        k("s_barrier")
        def woff(ni, kk, j):
            t = t0 + ni
            return kk*3584 + ((3*j + (t >> 1))*256 + (t & 1)*32 if t < 6 else 6*256 + j*32)
        g = Gemm(k, 2, Nt, 2, 1, S, 32, STG, lambda mi, ni: acc0 + 16*(mi*Nt+ni), xf, wf, vXa, vWa, vXl, vWl,
                 xoff=lambda mi, kk: mi*2048 + kk*1024, woff=woff, dma=dma.issue, npieces=npc, bpos=bpos, rpg=rpg)
        g.run()
        srd(k, 8, 24, WS_ACT, 14 * MB)
        k("s_mul_i32 s37, s37, 224*1024")
        for ni in range(Nt):
            t = t0 + ni
            if t < 6: k(f"s_add_u32 s44, s35, {16*t}")
            else: k("s_mov_b32 s44, s36")
            k("s_lshl_b32 s44, s44, 6")
            k("s_add_u32 s44, s44, s37")
            k("s_add_u32 s45, s44, 224*1024")
            for mi in range(2):
                a = acc0 + 16*(mi*Nt+ni)
                T = xf[0]
                for r in range(8): k(f"v_mul_f32 v{T+r}, v{a+r}, v{vS+2*mi}")
                for r in range(8): k(f"v_exp_f32 v{T+r}, v{T+r}")
                for r in range(8): k(f"v_mul_f32 v{a+r}, v{a+r}, v{a+8+r}")
                for r in range(8): k(f"v_fma_f32 v{T+r}, v{T+r}, v{vS+2*mi+1}, v{vS+2*mi+1}")
                for r in range(8): k(f"v_rcp_f32 v{T+r}, v{T+r}")
                for r in range(8): k(f"v_mul_f32 v{a+r}, v{a+r}, v{T+r}")
                for r in range(4): k(f"v_cvt_pk_bf16_f32 v{a+8+r}, v{a+2*r}, v{a+2*r+1}")
                k(f"buffer_store_dwordx4 {vr(a+8, 4)}, v{vT}, s[8:11], s{44+mi} offen{STA}")
        if STAMP: stamp(k); k("s_waitcnt vmcnt(0)"); stamp_out(k, 24, 4)
        k("s_endpgm")
    path(False)
    k("gu_b:")
    path(True)
    tail(k)
    k.lds = S * STG + 1024
    return k

def k_attn(prefetch=True):
    S = 4
    FLAG = 65536
    k = Kern("attn_kernel", (256, 1, 1), (512, 1, 1), 65536 + 64, vgpr=128)
    head(k, 256, [("ws", 6), ("wg", 44), ("wu", 46), ("wd", 48), ("wo", 50)])
    al = Alloc(4)
    qf = al(8, 4); negm = al(16, 4); sa = [al(16, 4), al(16, 4)]; P = al(8, 4); O = al(16, 4); L = al(4, 4)
    sel = al(4, 4); kf = al(8, 4); vf = al(8, 4); rm = al(16, 4); pf = al(4, 4); vT = al(); vK = al()
    k.vgpr = al.n
    k(f"""
    s_lshl_b32 s30, s90, 2
    s_lshr_b32 s31, s91, 3
    s_add_u32 s30, s30, s31
    s_and_b32 s31, s91, 7
    s_lshl_b32 s32, s30, 17
    s_lshl_b32 s33, s31, 3
    s_add_u32 s33, s33, s3
    v_lshlrev_b32 v{vT}, 4, v0
    s_lshl_b32 s34, s3, 10
    v_add_u32 v{vK}, s34, v{vT}
    s_lshl_b32 s35, s33, 11
    s_waitcnt lgkmcnt(0)
    """)
    srd(k, 8, 6, WS_Q, 131072, soff=32)
    srd(k, 12, 6, WS_K, 131072, soff=32)
    srd(k, 16, 6, WS_V, 131072, soff=32)
    def dma(slot):
        return [f"s_add_u32 m0, s34, {slot*16384}", "s_nop 0",
                f"buffer_load_dwordx4 v{vK}, s[12:15], s37 offen lds",
                f"s_add_u32 m0, s34, {slot*16384 + 8192}", "s_nop 0",
                f"buffer_load_dwordx4 v{vK}, s[16:19], s37 offen lds",
                "s_add_u32 s37, s37, 8192"]
    PF = [f"buffer_load_dwordx4 {vr(pf,4)}, v{vT}, s[24:27], s41 offen", "s_add_u32 s41, s41, 1024"] if prefetch else []
    npf = 1 if prefetch else 0
    k(f"""
    buffer_load_dwordx4 {vr(qf,4)}, v{vT}, s[8:11], s35 offen
    buffer_load_dwordx4 {vr(qf+4,4)}, v{vT}, s[8:11], s35 offen offset:1024
    s_mov_b32 s36, 1
    s_mov_b32 s37, 0
    """)
    for a in dma(0): k(a)
    k(f"""
    s_lshr_b32 s38, s3, 1
    s_movk_i32 s26, 14336
    s_cmp_eq_u32 s38, 1
    s_cselect_b32 s44, s46, s44
    s_cselect_b32 s45, s47, s45
    s_cmp_eq_u32 s38, 2
    s_cselect_b32 s44, s48, s44
    s_cselect_b32 s45, s49, s45
    s_cmp_eq_u32 s38, 3
    s_cselect_b32 s44, s50, s44
    s_cselect_b32 s45, s51, s45
    s_cselect_b32 s26, 4096, s26
    s_lshl_b32 s38, s2, 1
    s_and_b32 s39, s3, 1
    s_add_u32 s38, s38, s39
    s_mul_i32 s38, s38, s26
    s_add_u32 s24, s44, s38
    s_addc_u32 s25, s45, 0
    s_mov_b32 s27, 0x00020000
    s_mov_b32 s41, 0
    """)
    srd(k, 20, 6, WS_MU1, 0x10000 + 0x40000)
    k(f"""
    s_lshl_b32 s38, s30, 7
    s_add_u32 s38, s38, {WS_RM - WS_MU1}
    v_lshrrev_b32 v1, 5, v0
    v_lshlrev_b32 v1, 5, v1
    """)
    for q, off in enumerate((0, 16, 64, 80)):
        k(f"buffer_load_dwordx4 {vr(rm+4*q,4)}, v1, s[20:23], s38 offen offset:{off}")
    srd(k, 52, 6, WS_EX, 8 * MB)
    k(f"""
    s_lshl_b32 s38, s2, 3
    s_add_u32 s38, s38, s3
    s_lshl_b32 s38, s38, 12
    """)
    for r in range(4): k(f"v_mov_b32 v{O+r}, -1")
    for q in range(4): k(f"buffer_store_dwordx4 {vr(O,4)}, v{vT}, s[52:55], s38 offen offset:{q*1024} sc1")
    k(f"""
    v_bfe_u32 v1, v0, 2, 1
    v_bfe_u32 v2, v0, 4, 1
    v_cmp_eq_u32 vcc, v1, v2
    v_mov_b32 v1, 0x3f803f80
    v_cndmask_b32 v{sel}, 0, v1, vcc
    v_mov_b32 v{sel+1}, v{sel}
    v_mov_b32 v{sel+2}, v{sel}
    v_mov_b32 v{sel+3}, v{sel}
    v_mov_b32 v1, 0
    v_mov_b32 v2, {FLAG}
    ds_write_b32 v2, v1
    s_branch attn_go
    """)
    k("attn_restart:")
    k(f"""
    s_mov_b32 s38, 0
    v_mov_b32 v{negm}, 0xff800000
    attn_scan:
    buffer_load_dwordx4 {vr(kf,4)}, v{vT}, s[12:15], s38 offen
    buffer_load_dwordx4 {vr(kf+4,4)}, v{vT}, s[12:15], s38 offen offset:1024
    s_waitcnt vmcnt(0)
    v_mfma_f32_32x32x16_bf16 {vr(sa[0],16)}, {vr(kf,4)}, {vr(qf,4)}, 0
    v_mfma_f32_32x32x16_bf16 {vr(sa[0],16)}, {vr(kf+4,4)}, {vr(qf+4,4)}, {vr(sa[0],16)}
    s_add_u32 s38, s38, 2048
    """)
    for r in range(0, 16, 2):
        k(f"v_max3_f32 v{negm}, v{sa[0]+r}, v{sa[0]+r+1}, v{negm}")
    k(f"""
    s_cmp_lg_u32 s38, 131072
    s_cbranch_scc1 attn_scan
    s_mov_b32 s37, 0
    """)
    for a in dma(0): k(a)
    for q in range(8): k(f"buffer_load_dwordx4 {vr(pf,4)}, v{vT}, s[12:15], 0 offen")
    k("attn_go:")
    for s in range(1, S - 1):
        for a in dma(s) + PF: k(a)
    for r in range(16): k(f"v_mov_b32 v{O+r}, 0")
    for r in range(4): k(f"v_mov_b32 v{L+r}, 0")
    for r in range(4): k(f"v_mov_b32 v{P+4+r}, 0")
    for r in range(4): k(f"v_mov_b32 v{vf+4+r}, 0")
    k(f"""
    s_waitcnt vmcnt({8 + (2+npf)*(S-2)}) lgkmcnt(0)
    s_barrier
    ds_read_b128 {vr(kf,4)}, v{vT}
    ds_read_b128 {vr(kf+4,4)}, v{vT} offset:1024
    ds_read_b128 {vr(vf,4)}, v{vT} offset:8192
    s_waitcnt lgkmcnt(2)
    v_mfma_f32_32x32x16_bf16 {vr(sa[0],16)}, {vr(kf,4)}, {vr(qf,4)}, 0
    s_waitcnt lgkmcnt(1)
    v_mfma_f32_32x32x16_bf16 {vr(sa[0],16)}, {vr(kf+4,4)}, {vr(qf+4,4)}, {vr(sa[0],16)}
    ds_read_b128 {vr(kf,4)}, v{vT} offset:2048
    ds_read_b128 {vr(kf+4,4)}, v{vT} offset:3072
    s_mov_b32 s39, 4
    s_cmp_lg_u32 s36, 1
    s_cbranch_scc1 attn_havemax
    v_max_f32 v{negm}, v{sa[0]}, v{sa[0]+1}
    """)
    for r in range(2, 16, 2):
        k(f"v_max3_f32 v{negm}, v{sa[0]+r}, v{sa[0]+r+1}, v{negm}")
    k(f"""
    attn_havemax:
    v_mov_b32 v1, v{negm}
    v_permlane32_swap_b32 v{negm}, v1
    v_max_f32 v1, v{negm}, v1
    """)
    for r in range(16): k(f"v_sub_f32 v{negm+r}, 0, v1")
    for r in range(16): k(f"v_sub_f32 v{sa[0]+r}, v{sa[0]+r}, v1")
    k("s_waitcnt lgkmcnt(0)")
    stamp(k)
    k(""".p2align 4
    attn_loop:
    """)
    def koff(t, j): t %= 16; return (t >> 2)*16384 + (t & 3)*2048 + j*1024
    def voff(t, j): return koff(t, j) + 8192
    for t in range(16):
        c, n = sa[t & 1], sa[(t & 1) ^ 1]
        pre = []
        if t & 3 == 2:
            k(f"s_waitcnt vmcnt({(2+npf)*(S-3) + npf})")
            k("s_barrier")
            pre = dma(((t >> 2) + S - 1) % S) + PF
        E = lambda a, b: [k(f"v_exp_f32 v{c+r}, v{c+r}") for r in range(a, b)]
        C = lambda a, b: [k(f"v_cvt_pk_bf16_f32 v{P+r}, v{c+2*r}, v{c+2*r+1}") for r in range(a, b)]
        k("s_waitcnt lgkmcnt(3)")
        k(f"v_mfma_f32_32x32x16_bf16 {vr(n,16)}, {vr(kf,4)}, {vr(qf,4)}, {vr(negm,16)}")
        k(f"ds_read_b128 {vr(kf,4)}, v{vT} offset:{koff(t+2, 0)}")
        E(0, 4)
        for a in pre[:3]: k(a)
        k("s_waitcnt lgkmcnt(3)")
        k(f"v_mfma_f32_32x32x16_bf16 {vr(O,16)}, {vr(vf+4,4)}, {vr(P+4,4)}, {vr(O,16)}")
        k(f"ds_read_b128 {vr(vf+4,4)}, v{vT} offset:{voff(t, 1)}")
        E(4, 8)
        k(f"v_mfma_f32_16x16x32_bf16 {vr(L,4)}, {vr(sel,4)}, {vr(P+4,4)}, {vr(L,4)}")
        C(0, 4)
        for a in pre[3:7]: k(a)
        k("s_waitcnt lgkmcnt(3)")
        k(f"v_mfma_f32_32x32x16_bf16 {vr(n,16)}, {vr(kf+4,4)}, {vr(qf+4,4)}, {vr(n,16)}")
        k(f"ds_read_b128 {vr(kf+4,4)}, v{vT} offset:{koff(t+2, 1)}")
        E(8, 12)
        for a in pre[7:]: k(a)
        k("s_waitcnt lgkmcnt(3)")
        k(f"v_mfma_f32_32x32x16_bf16 {vr(O,16)}, {vr(vf,4)}, {vr(P,4)}, {vr(O,16)}")
        k(f"ds_read_b128 {vr(vf,4)}, v{vT} offset:{voff(t+1, 0)}")
        E(12, 16)
        k(f"v_mfma_f32_16x16x32_bf16 {vr(L,4)}, {vr(sel,4)}, {vr(P,4)}, {vr(L,4)}")
        C(4, 8)
    k(f"""
    s_sub_u32 s39, s39, 1
    s_cmp_lg_u32 s39, 0
    s_cbranch_scc1 attn_loop
    s_waitcnt lgkmcnt(0)
    """)
    stamp(k)
    k(f"""
    v_mfma_f32_32x32x16_bf16 {vr(O,16)}, {vr(vf+4,4)}, {vr(P+4,4)}, {vr(O,16)}
    v_mfma_f32_16x16x32_bf16 {vr(L,4)}, {vr(sel,4)}, {vr(P+4,4)}, {vr(L,4)}
    s_waitcnt vmcnt(0)
    s_nop 7
    v_rcp_f32 v1, v{L}
    """)
    for r in range(16): k(f"v_mul_f32 v{O+r}, v{O+r}, v1")
    k(f"""
    s_cmp_lg_u32 s36, 1
    s_cbranch_scc1 attn_store
    v_max3_f32 v2, |v{O}|, |v{O+1}|, |v{L}|
    """)
    k(f"v_mul_f32 v2, 0, v2")
    for r in range(2, 16): k(f"v_fma_f32 v2, 0, v{O+r}, v2")
    k(f"""
    v_fma_f32 v2, 0, v{O}, v2
    v_fma_f32 v2, 0, v{O+1}, v2
    v_add_f32 v2, v2, v{L}
    s_mov_b32 s40, 0x5d800000
    v_cmp_nlt_f32 vcc, v2, s40
    s_nop 1
    s_cbranch_vccz attn_vote
    v_mov_b32 v1, 1
    v_mov_b32 v2, {FLAG}
    ds_write_b32 v2, v1
    attn_vote:
    v_mov_b32 v2, {FLAG}
    s_waitcnt lgkmcnt(0)
    s_barrier
    ds_read_b32 v1, v2
    s_waitcnt lgkmcnt(0)
    v_readfirstlane_b32 s40, v1
    s_cmp_eq_u32 s40, 0
    s_cbranch_scc1 attn_store
    s_mov_b32 s36, 64
    s_branch attn_restart
    attn_store:
    s_lshl_b32 s35, s33, 6
    s_lshl_b32 s40, s30, 1
    s_add_u32 s35, s35, s40
    s_lshl_b32 s35, s35, 10
    """)
    srd(k, 8, 6, WS_O, 4 * MB)
    k(f"v_mul_f32 v1, v{O}, v{rm}")
    k(f"v_mul_f32 v2, v{O+1}, v{rm+1}")
    for r in range(2, 16, 2):
        k(f"v_fmac_f32 v1, v{O+r}, v{rm+r}")
        k(f"v_fmac_f32 v2, v{O+r+1}, v{rm+r+1}")
    for r in range(8): k(f"v_cvt_pk_bf16_f32 v{O+r}, v{O+2*r}, v{O+2*r+1}")
    k(f"buffer_store_dwordx4 {vr(O,4)}, v{vT}, s[8:11], s35 offen{ST}")
    k(f"buffer_store_dwordx4 {vr(O+4,4)}, v{vT}, s[8:11], s35 offen offset:1024{ST}")
    k("v_add_f32 v1, v1, v2")
    xlane_sum(k, 1, 2, (5,))
    k(f"""
    s_lshl_b32 s35, s33, 12
    s_lshr_b32 s40, s30, 2
    s_lshl_b32 s40, s40, 9
    s_add_u32 s35, s35, s40
    s_and_b32 s40, s30, 3
    s_lshl_b32 s40, s40, 2
    s_add_u32 s35, s35, s40
    s_add_u32 s35, s35, {WS_MUP - WS_MU1}
    s_mov_b32 exec_hi, 0
    buffer_store_dword v1, v{vT}, s[20:23], s35 offen
    """)
    if STAMP: stamp(k); k("s_waitcnt vmcnt(0)"); stamp_out(k, 6, 4)
    tail(k)
    return k

def build_all():
    return [k_ln1(), k_qkv(), k_attn(), k_n64("wo", 1024, "wo", WS_O), k_gu(), k_down2(rot=bool(os.environ.get("ROT")), **eval(os.environ.get("DOWNP", "{}")))]

if __name__ == "__main__":
    out = sys.argv[1] if len(sys.argv) > 1 else "sequential_preLN__mha_block__swiglu_ffn__prompt.s"
    ks = build_all()
    txt = emit(ks)
    open(out, "w").write(txt)
    for k in ks: print(k.name, "vgpr", k.vgpr, "lds", k.lds, "lines", len(k.lines), "nops", k.nops_added)
```

```python
import sys, math
from asmlib import *

WS_XN, WS_Q, WS_K, WS_V = 0x0000000, 0x0400000, 0x0800000, 0x0C00000
WS_O, WS_H, WS_ACT = 0x1000000, 0x1400000, 0x1800000
WS_STAT, WS_MU1, WS_RM, WS_MUP, WS_HC = 0x2800000, 0x2900000, 0x2904000, 0x2910000, 0x2A00000
WS_EX = 0x4000000
ARG = dict(x=0, wqkv=8, wo=16, wg=32, wu=40, wd=48, out=56, dbg=64, ws=72)
MB = 1 << 20

class Alloc:
    def __init__(self, start=1): self.n = start
    def __call__(self, cnt=1, align=1):
        self.n = (self.n + align - 1) // align * align
        r = self.n; self.n += cnt
        return r

def vr(b, n): return f"v[{b}:{b+n-1}]" if n > 1 else f"v{b}"
def sr(b, n): return f"s[{b}:{b+n-1}]" if n > 1 else f"s{b}"

def load_ptrs(k, names):
    for a, s in names:
        k(f"s_load_dwordx2 s[{s}:{s+1}], s[0:1], {ARG[a]}")

def srd(k, d, ptr, off, size, soff=None):
    if off:
        k(f"s_add_u32 s{d}, s{ptr}, {hex(off)}")
        k(f"s_addc_u32 s{d+1}, s{ptr+1}, 0")
    else:
        k(f"s_mov_b32 s{d}, s{ptr}")
        k(f"s_mov_b32 s{d+1}, s{ptr+1}")
    if soff is not None:
        k(f"s_add_u32 s{d}, s{d}, s{soff}")
        k(f"s_addc_u32 s{d+1}, s{d+1}, 0")
    k(f"s_mov_b32 s{d+2}, {hex(size)}")
    k(f"s_mov_b32 s{d+3}, 0x00020000")

def head(k, nwg, ptrs):
    k(f"s_cmp_ge_u32 s2, {nwg}")
    k(f"s_cbranch_scc1 {k.name}_end")
    k.nst = 0
    if STAMP:
        k("s_memrealtime s[94:95]")
        stamp(k)
    load_ptrs(k, ptrs)
    k("v_lshrrev_b32 v1, 6, v0")
    k("v_and_b32 v0, 63, v0")
    k("v_readfirstlane_b32 s3, v1")
    k("s_and_b32 s90, s2, 7")
    k("s_lshr_b32 s91, s2, 3")
    if STAMP:
        k("s_mov_b32 s93, s3")
        stamp(k)

import os
STAMP = int(os.environ.get("STAMP", "0"))
WS_STAMP = 0x3000000
ST = os.environ.get("ST", "sc1")
if ST: ST = " " + ST
STA = os.environ.get("STA", "sc1")
if STA: STA = " " + STA
KID = dict(ln1=0, csum=1, qkv=2, attn=3, wo=4, gu=5, down=6)
def stamp(k, i=None, real=False):
    if not STAMP: return
    if not real:
        i = k.nst; k.nst += 1
        assert i <= 8
    k(f"s_mem{'real' if real else ''}time s[{66+2*i}:{67+2*i}]")
    k("s_waitcnt lgkmcnt(0)")
def stamp_out(k, ws, n=None):
    if not STAMP: return
    stamp(k); stamp(k, 11, True)
    n = k.nst
    kid = KID[k.name[:-7]]
    k(f"s_add_u32 s84, s{ws}, {hex(WS_STAMP + kid * 0x100000)}")
    k(f"s_addc_u32 s85, s{ws+1}, 0")
    k("s_mov_b32 s86, 0x100000")
    k("s_mov_b32 s87, 0x00020000")
    k("s_lshl_b32 s92, s2, 3")
    k("s_add_u32 s92, s92, s93")
    k("s_lshl_b32 s92, s92, 6")
    k("s_mov_b64 exec, 1")
    k("v_mov_b32 v1, 0")
    for i in list(range(n)) + [9, 10, 11]:
        k({9: f"v_mov_b32 v2, {n}", 10: "v_mov_b32 v2, s94"}.get(i, f"v_mov_b32 v2, s{66+2*i}"))
        k(f"buffer_store_dword v2, v1, s[84:87], s92 offen offset:{4*i}")
    k("s_waitcnt vmcnt(0)")

def tail(k):
    k(f"{k.name}_end:")
    k("s_endpgm")

def tile_map_4x8(k, mb, nb):
    k(f"""
    s_lshr_b32 s{mb}, s90, 1
    s_lshl_b32 s{mb}, s{mb}, 2
    s_lshr_b32 s92, s91, 3
    s_add_u32 s{mb}, s{mb}, s92
    s_and_b32 s{nb}, s90, 1
    s_lshl_b32 s{nb}, s{nb}, 3
    s_and_b32 s92, s91, 7
    s_add_u32 s{nb}, s{nb}, s92
    """)

def xlane_sum(k, v, t, bits):
    for b in bits:
        if b == 0:
            k(f"v_add_f32_dpp v{v}, v{v}, v{v} quad_perm:[1,0,3,2] row_mask:0xf bank_mask:0xf")
        elif b == 1:
            k(f"v_add_f32_dpp v{v}, v{v}, v{v} quad_perm:[2,3,0,1] row_mask:0xf bank_mask:0xf")
        elif b == 2:
            k(f"v_add_f32_dpp v{v}, v{v}, v{v} row_half_mirror row_mask:0xf bank_mask:0xf")
        elif b == 3:
            k(f"v_add_f32_dpp v{v}, v{v}, v{v} row_ror:8 row_mask:0xf bank_mask:0xf")
        else:
            k(f"v_mov_b32 v{t}, v{v}")
            k(f"v_permlane{16 if b == 4 else 32}_swap_b32 v{v}, v{t}")
            k(f"v_add_f32 v{v}, v{v}, v{t}")

def k_ln1(prefetch=True):
    k = Kern("ln1_kernel", (256, 1, 1), (256, 1, 1), 512, vgpr=80)
    head(k, 256, [("x", 4), ("ws", 6), ("wqkv", 24), ("wo", 26)])
    k("""
    s_lshl_b32 s30, s90, 8
    s_lshl_b32 s31, s91, 3
    s_add_u32 s30, s30, s31
    v_and_b32 v1, 7, v0
    v_lshrrev_b32 v2, 3, v0
    v_add_u32 v3, s30, v1
    v_lshlrev_b32 v3, 11, v3
    v_lshlrev_b32 v4, 4, v2
    v_add_u32 v3, v3, v4
    s_lshl_b32 s31, s3, 9
    v_add_u32 v3, s31, v3
    s_waitcnt lgkmcnt(0)
    """)
    srd(k, 8, 4, 0, 4 * MB)
    srd(k, 12, 6, WS_XN, 4 * MB)
    for i in range(4):
        k(f"buffer_load_dwordx4 v[{8+4*i}:{11+4*i}], v3, s[8:11], 0 offen offset:{128*i}")
    srd(k, 20, 26, 0, 2 * MB)
    srd(k, 44, 6, WS_MU1, 0x8000)
    k("""
    s_lshl_b32 s36, s2, 2
    s_add_u32 s36, s36, s3
    s_lshl_b32 s37, s36, 11
    v_lshlrev_b32 v62, 5, v0
    buffer_load_dwordx4 v[68:71], v62, s[20:23], s37 offen
    buffer_load_dwordx4 v[72:75], v62, s[20:23], s37 offen offset:16
    """)
    npf = 2
    if prefetch:
        srd(k, 16, 24, 0, 6 * MB)
        k("""
        s_lshl_b32 s32, s91, 5
        s_lshl_b32 s33, s3, 3
        s_add_u32 s32, s32, s33
        s_mul_i32 s32, s32, 6144
        s_and_b32 s33, s90, 1
        s_lshl_b32 s33, s33, 10
        s_add_u32 s32, s32, s33
        v_lshlrev_b32 v5, 4, v0
        """)
        for i in range(8):
            for sec in range(3):
                k(f"s_add_u32 s33, s32, {i*6144 + sec*2048}")
                k(f"buffer_load_dwordx4 v[64:67], v5, s[16:19], s33 offen")
                npf += 1
    k("""
    s_lshr_b32 s31, s30, 5
    s_lshl_b32 s31, s31, 16
    s_lshl_b32 s34, s3, 14
    s_add_u32 s31, s31, s34
    s_and_b32 s34, s30, 31
    s_lshl_b32 s34, s34, 4
    s_add_u32 s31, s31, s34
    v_lshrrev_b32 v4, 4, v0
    v_lshlrev_b32 v4, 10, v4
    v_and_b32 v5, 1, v2
    v_lshlrev_b32 v5, 9, v5
    v_add_u32 v4, v4, v5
    v_lshlrev_b32 v5, 4, v1
    v_add_u32 v4, v4, v5
    v_add_u32 v4, s31, v4
    s_movk_i32 s40, 0x1000
    s_movk_i32 s41, 0x2000
    s_movk_i32 s42, 0x3000
    s_lshl_b32 s35, s3, 5
    v_lshlrev_b32 v6, 2, v1
    v_add_u32 v7, s35, v6
    """)
    k(f"s_waitcnt vmcnt({npf})")
    stamp(k)
    F = 24
    for i in range(16):
        k(f"v_lshlrev_b32 v{F+2*i}, 16, v{8+i}")
        k(f"v_and_b32 v{F+2*i+1}, 0xffff0000, v{8+i}")
    def tree(dst, op):
        k(f"v_add_f32 v{dst}, v{F}, v{F+1}") if op == "sum" else None
    k(f"v_add_f32 v56, v{F}, v{F+1}")
    k(f"v_add_f32 v57, v{F+2}, v{F+3}")
    for i in range(4, 32, 2):
        k(f"v_add_f32 v56, v56, v{F+i}")
        k(f"v_add_f32 v57, v57, v{F+i+1}")
    k("v_add_f32 v56, v56, v57")
    xlane_sum(k, 56, 57, (3, 4, 5))
    k("""
    ds_write_b32 v7, v56
    s_waitcnt lgkmcnt(0)
    s_barrier
    ds_read_b32 v58, v6
    ds_read_b32 v59, v6 offset:32
    ds_read_b32 v60, v6 offset:64
    ds_read_b32 v61, v6 offset:96
    s_waitcnt lgkmcnt(0)
    v_add_f32 v58, v58, v59
    v_add_f32 v60, v60, v61
    v_add_f32 v58, v58, v60
    v_mul_f32 v58, 0x3a800000, v58
    s_lshl_b32 s38, s30, 2
    v_cmp_gt_u32 vcc, 8, v0
    s_cmp_eq_u32 s3, 0
    s_cselect_b64 exec, vcc, 0
    buffer_store_dword v58, v6, s[44:47], s38 offen
    s_mov_b64 exec, -1
    """)
    for i in range(32):
        k(f"v_sub_f32 v{F+i}, v{F+i}, v58")
    k(f"v_mul_f32 v56, v{F}, v{F}")
    k(f"v_mul_f32 v57, v{F+1}, v{F+1}")
    for i in range(2, 32, 2):
        k(f"v_fmac_f32 v56, v{F+i}, v{F+i}")
        k(f"v_fmac_f32 v57, v{F+i+1}, v{F+i+1}")
    k("v_add_f32 v56, v56, v57")
    xlane_sum(k, 56, 57, (3, 4, 5))
    k("""
    ds_write_b32 v7, v56 offset:128
    s_waitcnt lgkmcnt(0)
    s_barrier
    ds_read_b32 v58, v6 offset:128
    ds_read_b32 v59, v6 offset:160
    ds_read_b32 v60, v6 offset:192
    ds_read_b32 v61, v6 offset:224
    s_waitcnt lgkmcnt(0)
    v_add_f32 v58, v58, v59
    v_add_f32 v60, v60, v61
    v_add_f32 v58, v58, v60
    v_mov_b32 v59, 0x3727c5ac
    v_fmac_f32 v59, 0x3a800000, v58
    v_rsq_f32 v59, v59
    """)
    for i in range(32):
        k(f"v_mul_f32 v{F+i}, v{F+i}, v59")
    for i in range(16):
        k(f"v_cvt_pk_bf16_f32 v{8+i}, v{F+2*i}, v{F+2*i+1}")
    for i, so in enumerate(("0", "s40", "s41", "s42")):
        k(f"buffer_store_dwordx4 v[{8+4*i}:{11+4*i}], v4, s[12:15], {so} offen")
    k(f"s_waitcnt vmcnt({npf - 2 + 5})")
    k("v_lshlrev_b32 v56, 16, v68")
    k("v_and_b32 v57, 0xffff0000, v68")
    for i in range(1, 8):
        k(f"v_lshlrev_b32 v58, 16, v{68+i}")
        k(f"v_and_b32 v59, 0xffff0000, v{68+i}")
        k("v_add_f32 v56, v56, v58")
        k("v_add_f32 v57, v57, v59")
    k("v_add_f32 v56, v56, v57")
    xlane_sum(k, 56, 57, (0, 1, 2, 3, 4, 5))
    k(f"""
    v_mul_f32 v56, 0x3a800000, v56
    s_lshl_b32 s36, s36, 2
    s_add_u32 s36, s36, {WS_RM - WS_MU1}
    v_mov_b32 v57, 0
    s_mov_b64 exec, 1
    buffer_store_dword v56, v57, s[44:47], s36 offen
    """)
    stamp(k)
    k("s_waitcnt vmcnt(0)")
    stamp_out(k, 6, 3)
    tail(k)
    return k

def csum_addr(k, wg_sgpr, wave="s3"):
    k(f"""
    s_and_b32 s50, {wg_sgpr}, 1
    s_lshr_b32 s52, {wg_sgpr}, 1
    s_and_b32 s52, s52, 15
    s_lshr_b32 s51, {wg_sgpr}, 5
    """)

def k_csum():
    k = Kern("csum_kernel", (224, 1, 1), (512, 1, 1), 16384, vgpr=64)
    head(k, 224, [("wg", 4), ("wu", 6), ("ws", 24)])
    csum_addr(k, "s2")
    k("""
    s_waitcnt lgkmcnt(0)
    s_cmp_eq_u32 s50, 0
    s_cselect_b32 s4, s4, s6
    s_cselect_b32 s5, s5, s7
    """)
    srd(k, 8, 4, 0, 7 * MB)
    srd(k, 12, 24, WS_CSUM, 2 * 3584 * 64)
    k("""
    s_lshl_b32 s53, s52, 6
    s_lshl_b32 s54, s3, 3
    s_add_u32 s53, s53, s54
    s_mul_i32 s53, s53, 7168
    s_lshl_b32 s54, s51, 10
    s_add_u32 s53, s53, s54
    v_lshlrev_b32 v1, 4, v0
    """)
    for i in range(8):
        k(f"s_add_u32 s54, s53, {i*7168}")
        k(f"buffer_load_dwordx4 v[{8+4*i}:{11+4*i}], v1, s[8:11], s54 offen")
    k("s_waitcnt vmcnt(0)")
    for e in range(4):
        k(f"v_lshlrev_b32 v{40+2*e}, 16, v{8+e}")
        k(f"v_and_b32 v{41+2*e}, 0xffff0000, v{8+e}")
    for i in range(1, 8):
        for e in range(4):
            k(f"v_lshlrev_b32 v48, 16, v{8+4*i+e}")
            k(f"v_and_b32 v49, 0xffff0000, v{8+4*i+e}")
            k(f"v_add_f32 v{40+2*e}, v{40+2*e}, v48")
            k(f"v_add_f32 v{41+2*e}, v{41+2*e}, v49")
    k("""
    s_lshl_b32 s54, s3, 11
    v_lshlrev_b32 v2, 5, v0
    v_add_u32 v2, s54, v2
    ds_write_b128 v2, v[40:43]
    ds_write_b128 v2, v[44:47] offset:16
    s_lshl_b32 s54, s3, 8
    v_lshlrev_b32 v3, 2, v0
    v_add_u32 v3, s54, v3
    s_waitcnt lgkmcnt(0)
    s_barrier
    """)
    for w in range(8):
        k(f"ds_read_b32 v{8+w}, v3 offset:{w*2048}")
    k("s_waitcnt lgkmcnt(0)")
    for w in range(1, 8):
        k(f"v_add_f32 v8, v8, v{8+w}")
    k("""
    s_mul_i32 s54, s50, 3584
    s_lshl_b32 s55, s51, 9
    s_add_u32 s54, s54, s55
    s_lshl_b32 s55, s3, 6
    s_add_u32 s54, s54, s55
    s_lshl_b32 s54, s54, 6
    s_lshl_b32 s55, s52, 2
    s_add_u32 s54, s54, s55
    v_lshlrev_b32 v4, 6, v0
    buffer_store_dword v8, v4, s[12:15], s54 offen
    s_waitcnt vmcnt(0)
    """)
    tail(k)
    return k

class Fifo:
    def __init__(self, k): self.k, self.q = k, []
    def issue(self, tag): self.q.append(tag)
    def need(self, tags):
        pos = [i for i, t in enumerate(self.q) if t in tags]
        if not pos: return
        younger = len(self.q) - 1 - max(pos)
        n = min(younger, 15)
        self.k(f"s_waitcnt lgkmcnt({n})")
        self.q = self.q[len(self.q) - n:] if n else []
    def drain(self):
        if self.q: self.k("s_waitcnt lgkmcnt(0)")
        self.q = []

class Gemm:
    def __init__(self, k, Mt, Nt, KK, G, S, nsteps, stage_bytes, acc, xf, wf, vXa, vWa, vXl, vWl,
                 xoff, woff, swap=lambda ni: False, dma=None, npieces=0, bpos=2, rpg=2, sRd=60, sCnt=61,
                 xswz=False, peel=0, xm=None, xfill=None, barhook=None, tailreads=None):
        self.__dict__.update(locals())
        self.cur = -1
        self.fifo = Fifo(k)
        self.ng = KK // G
        assert KK % G == 0

    def reads(self, g, st):
        out = []
        for q in range(self.G):
            kk = g * self.G + q
            xs = [(f"ds_read_b128 {vr(self.xf[st] + 4*(q*self.Mt+mi), 4)}, v{self.vXa + (kk if self.xswz else 0)} offset:{self.xoff(mi, kk)}", ("x", st, q, mi)) for mi in range(self.Mt)]
            ws = []
            for ni in range(self.Nt):
                b = self.wf[st] + 4 * (q * self.Nt + ni)
                ws.append([(f"ds_read_b64_tr_b16 {vr(b + 2*j, 2)}, v{self.vWa} offset:{self.woff(ni, kk, j)}", ("w", st, q, ni)) for j in range(2)])
            out.append(xs[0]); out += ws[0]; out += xs[1:]
            for w in ws[1:]: out += w
        return out

    def mfmas(self, st):
        out = []
        for q in range(self.G):
            for ni in range(self.Nt):
                for mi in range(self.Mt):
                    a = vr(self.wf[st] + 4 * (q * self.Nt + ni), 4)
                    b = vr(self.xf[st] + 4 * (q * self.Mt + mi), 4)
                    if self.swap(ni): a, b = b, a
                    d = vr(self.acc(mi, ni), 16)
                    if os.environ.get("MF16"):
                        for h in range(2):
                            d = vr(self.acc(mi, ni) + 8*((st+q)&1) + 4*h, 4)
                            out.append((f"v_mfma_f32_16x16x32_bf16 {d}, {a}, {b}, {d}", {("x", st, q, mi), ("w", st, q, ni)}))
                        continue
                    out.append((f"v_mfma_f32_32x32x16_bf16 {d}, {a}, {b}, {d}", {("x", st, q, mi), ("w", st, q, ni)}))
                if self.xm and self.cur == 0:
                    out.append((self.xm(ni, vr(self.wf[st] + 4 * (q * self.Nt + ni), 4)), {("w", st, q, ni)}))
        return out

    def advance_slot(self):
        k = self.k
        return [f"s_add_u32 s{self.sRd}, s{self.sRd}, {self.stage_bytes}",
                f"s_cmp_ge_u32 s{self.sRd}, {self.S*self.stage_bytes}",
                f"s_cselect_b32 s{self.sRd}, 0, s{self.sRd}",
                f"v_add_u32 v{self.vXa}, s{self.sRd}, v{self.vXl}",
                f"v_add_u32 v{self.vWa}, s{self.sRd}, v{self.vWl}"] + (
                [f"v_xor_b32 v{self.vXa+kk}, {kk*32}, v{self.vXa}" for kk in range(1, self.KK)] if self.xswz else [])

    def group(self, st, fillers, barrier=None):
        k = self.k
        ms = self.mfmas(st)
        fl = list(fillers)
        for i, (m, tags) in enumerate(ms):
            if barrier is not None and i == min(self.bpos, len(ms) - 1):
                for a, t in fl:
                    k(a)
                    if t: self.fifo.issue(t)
                self.fifo.drain()
                if barrier[0] is not None: k(f"s_waitcnt vmcnt({barrier[0]})")
                if self.barhook and self.cur < 0: self.barhook()
                else: k("s_barrier")
                fl = list(barrier[1])
            self.fifo.need(tags)
            k(m)
            n = 0
            while fl and n < self.rpg:
                a, t = fl.pop(0)
                k(a)
                if t: self.fifo.issue(t); n += 1
                elif a.startswith("buffer"): n += 2
        for a, t in fl:
            k(a)
            if t: self.fifo.issue(t)

    def step(self, par, dma, vm, last=False, extra=False):
        for g in range(self.ng):
            st = (par + g) & 1
            if g < self.ng - 1:
                f = self.reads(g + 1, st ^ 1)
                if extra and g == 0: f = f + [(a, None) for a in self.dma()]
                if self.xfill and self.cur >= 0: f = f + [(a, None) for a in self.xfill(self.cur, g)]
                if g == self.ng - 2 and not last: f = f + [(a, None) for a in self.advance_slot()]
                self.group(st, f)
            elif last:
                self.group(st, self.tailreads or [])
            else:
                pre = [(a, None) for a in self.advance_slot()] if self.ng == 1 else []
                post = self.reads(0, st ^ 1)
                if dma:
                    d = [(a, None) for a in self.dma()]
                    post = post[:3] + d + post[3:] if False else post + d
                self.group(st, pre, barrier=(vm, post))
        return (par + self.ng) & 1

    def first_reads(self):
        for a, t in self.reads(0, 0):
            self.k(a); self.fifo.issue(t)

    def run(self):
        k, S, p = self.k, self.S, self.npieces
        stamp(k)
        self.first_reads()
        U = 2 if self.ng & 1 else 1
        n1 = (self.nsteps - S) if self.dma else (self.nsteps - 1)
        par = 0
        s = 0
        if self.dma:
            issued = 2
            while issued != s + S:
                issued += 1
                par = self.step(par, True, (issued - (s + 2)) * p, extra=True)
                issued += 1; s += 1
                assert issued <= s + S
        while s < self.peel:
            self.cur = s
            par = self.step(par, False, None); s += 1
        self.cur = -1
        while (n1 - s) % U:
            par = self.step(par, True if self.dma else False, (S - 2) * p if self.dma else None); s += 1
        if n1 - s > 0:
            lab = k.label("loop")
            k(f"s_mov_b32 s{self.sCnt}, {(n1 - s)//U}")
            state = list(self.fifo.q)
            k(".p2align 4")
            k(f"{lab}:")
            for u in range(U):
                par = self.step(par, True if self.dma else False, (S - 2) * p if self.dma else None)
            assert [t for t in self.fifo.q] == state[len(state)-len(self.fifo.q):] or True
            k(f"s_sub_u32 s{self.sCnt}, s{self.sCnt}, 1")
            k(f"s_cmp_lg_u32 s{self.sCnt}, 0")
            k(f"s_cbranch_scc1 {lab}")
            self.fifo.q = list(state)
        for s in range(n1, self.nsteps):
            last = s == self.nsteps - 1
            vm = max(0, self.nsteps - 2 - s) * p if self.dma else None
            par = self.step(par, False, vm, last)
        stamp(k)

class Dma:
    def __init__(self, k, pieces, S, stage_bytes, steps, sWr=62):
        self.__dict__.update(locals())
        k(f"s_mov_b32 s64, {stage_bytes}")
        k(f"s_mov_b32 s65, {-(S-1)*stage_bytes}")
    def issue(self):
        out = []
        for (srd_, va, so, mb, mi) in self.pieces:
            out.append(f"s_add_u32 m0, s{mb}, {mi}")
            out.append("s_nop 0")
            out.append(f"buffer_load_dwordx4 v{va}, s[{srd_}:{srd_+3}], s{so} offen lds")
        if callable(self.steps): out += self.steps()
        else:
            for (so, inc) in self.steps:
                out.append(f"s_add_u32 s{so}, s{so}, {inc}")
        bases = sorted({p[3] for p in self.pieces})
        out.append(f"s_add_u32 s{self.sWr}, s{self.sWr}, 1")
        out.append(f"s_cmp_ge_u32 s{self.sWr}, {self.S}")
        out.append(f"s_cselect_b32 s{self.sWr}, 0, s{self.sWr}")
        out.append("s_cselect_b32 s63, s65, s64")
        for b in bases:
            out.append(f"s_add_u32 s{b}, s{b}, s63")
        return out

def loader_loop(k, dma, S, p, nsteps, sCnt=61, first=2):
    nst0 = k.nst
    stamp(k)
    for s in range(first):
        for a in dma.issue(): k(a)
    stamp(k)
    k(f"s_waitcnt vmcnt({(first-1)*p})")
    stamp(k)
    k("s_barrier")
    stamp(k)
    issued, s = first, 0
    def interval(s, issued):
        tgt = min(nsteps, s + S, issued + (1 if s == 0 else 2))
        for _ in range(issued, tgt):
            for a in dma.issue(): k(a)
        k(f"s_waitcnt vmcnt({(tgt - (s + 2)) * p})")
        k("s_barrier")
        return tgt
    while issued != s - 1 + S:
        issued = interval(s, issued); s += 1
    nloop = nsteps - issued
    lab = k.label("ld")
    k(f"s_mov_b32 s{sCnt}, {nloop}")
    k(f"{lab}:")
    interval(s, issued)
    k(f"s_sub_u32 s{sCnt}, s{sCnt}, 1")
    k(f"s_cmp_lg_u32 s{sCnt}, 0")
    k(f"s_cbranch_scc1 {lab}")
    s += nloop; issued = nsteps
    while s < nsteps - 1:
        interval(s, issued); s += 1
    stamp_out(k, 6)
    k("s_endpgm")
    k.nst = nst0

def w_lane_dma(k, dst, t1, t2, ldw):
    k(f"""
    v_lshrrev_b32 v{t1}, 5, v0
    v_lshlrev_b32 v{t1}, 2, v{t1}
    v_bfe_u32 v{t2}, v0, 2, 2
    v_add_u32 v{t1}, v{t1}, v{t2}
    s_mov_b32 s92, {ldw}
    v_mul_lo_u32 v{dst}, v{t1}, s92
    v_bfe_u32 v{t1}, v0, 4, 1
    v_lshlrev_b32 v{t1}, 6, v{t1}
    v_and_b32 v{t2}, 3, v0
    v_lshlrev_b32 v{t2}, 4, v{t2}
    v_add3_u32 v{dst}, v{dst}, v{t1}, v{t2}
    """)

def w_lane_read(k, dst, t1, t2, hi_stride, g_stride):
    k(f"""
    v_lshrrev_b32 v{t1}, 5, v0
    v_mul_u32_u24 v{dst}, {hi_stride}, v{t1}
    v_bfe_u32 v{t1}, v0, 2, 2
    v_lshlrev_b32 v{t1}, 6, v{t1}
    v_add_u32 v{dst}, v{dst}, v{t1}
    v_bfe_u32 v{t1}, v0, 4, 1
    v_mul_u32_u24 v{t1}, {g_stride}, v{t1}
    v_add_u32 v{dst}, v{dst}, v{t1}
    v_and_b32 v{t1}, 1, v0
    v_lshlrev_b32 v{t1}, 4, v{t1}
    v_bfe_u32 v{t2}, v0, 1, 1
    v_lshlrev_b32 v{t2}, 3, v{t2}
    v_add3_u32 v{dst}, v{dst}, v{t1}, v{t2}
    """)

def k_qkv(S=4, G=1, bpos=2, rpg=2):
    XB, WBY = 16384, 24576
    STG = XB + WBY
    k = Kern("qkv_kernel", (256, 1, 1), (512, 1, 1), S * STG, vgpr=256)
    head(k, 256, [("wqkv", 4), ("ws", 6)])
    tile_map_4x8(k, 30, 31)
    k("s_waitcnt lgkmcnt(0)")
    k("s_cmp_ge_u32 s3, 4")
    k(f"s_cbranch_scc0 qkv_comp")
    srd(k, 8, 6, WS_XN, 4 * MB)
    srd(k, 12, 4, 0, 6 * MB)
    k("s_sub_u32 s3, s3, 4")
    k("""
    s_lshl_b32 s32, s30, 2
    s_add_u32 s32, s32, s3
    s_lshl_b32 s32, s32, 16
    v_lshlrev_b32 v1, 4, v0
    v_add_u32 v1, s32, v1
    """)
    for i in range(4): k(f"v_add_u32 v{8+i}, {i*1024}, v1")
    w_lane_dma(k, 2, 3, 4, 6144)
    k("""
    s_mul_i32 s33, s3, 16*6144
    s_lshl_b32 s34, s31, 7
    s_add_u32 s33, s33, s34
    v_add_u32 v2, s33, v2
    """)
    for i in range(6): k(f"v_add_u32 v{12+i}, {(i//3)*8*6144 + (i%3)*2048}, v2")
    if os.environ.get("WLIN"):
        k("s_mul_i32 s33, s31, 16*24576\ns_mul_i32 s34, s3, 6144\ns_add_u32 s33, s33, s34\nv_lshlrev_b32 v2, 4, v0\nv_add_u32 v2, s33, v2")
        for i in range(6): k(f"v_add_u32 v{12+i}, {i*1024}, v2")
    k(f"""
    s_mov_b32 s40, 0
    s_mov_b32 s41, 0
    s_lshl_b32 s42, s3, 12
    s_mul_i32 s43, s3, 6144
    s_add_u32 s43, s43, {XB}
    s_mov_b32 s62, 0
    """)
    pieces = [(8, 8+i, 40, 42, i*1024) for i in range(4)] + [(12, 12+i, 41, 43, i*1024) for i in range(6)]
    dma = Dma(k, pieces, S, STG, [(40, 4096), (41, 24576 if os.environ.get('WLIN') else 64*6144)])
    loader_loop(k, dma, S, 10, 16)
    k("qkv_comp:")
    al = Alloc(8)
    acc0 = al(96, 4)
    xf = [al(8*G, 4), al(8*G, 4)]
    wf = [al(12*G, 4), al(12*G, 4)]
    vXa, vWa, vXl, vWl, vO = al(), al(), al(), al(), al()
    k.vgpr = al.n
    srd(k, 8, 6, WS_Q, 12 * MB)
    k(f"""
    s_lshr_b32 s32, s3, 1
    s_and_b32 s33, s3, 1
    s_lshl_b32 s34, s32, 13
    v_lshlrev_b32 v{vO}, 4, v0
    v_add_u32 v{vXl}, s34, v{vO}
    """)
    w_lane_read(k, vWl, 2, 3, 3072, 32)
    k(f"""
    s_lshl_b32 s34, s33, 8
    s_add_u32 s34, s34, {XB}
    v_add_u32 v{vWl}, s34, v{vWl}
    v_mov_b32 v{vXa}, v{vXl}
    v_mov_b32 v{vWa}, v{vWl}
    s_mov_b32 s60, 0
    """)
    for i in range(96): k(f"v_mov_b32 v{acc0+i}, 0")
    k(f"""
    s_lshl_b32 s34, s31, 1
    s_add_u32 s34, s34, s33
    s_lshl_b32 s34, s34, 17
    s_lshl_b32 s35, s30, 2
    s_lshl_b32 s36, s32, 1
    s_add_u32 s35, s35, s36
    s_lshl_b32 s35, s35, 11
    s_add_u32 s34, s34, s35
    s_add_u32 s35, s34, {4*MB}
    s_add_u32 s36, s34, {8*MB}
    s_barrier
    """)
    g = Gemm(k, 2, 3, 4, G, S, 16, STG, lambda mi, ni: acc0 + 16*(mi*3+ni), xf, wf, vXa, vWa, vXl, vWl,
             xoff=lambda mi, kk: mi*4096 + kk*1024,
             woff=lambda ni, kk, j: kk*6144 + ni*1024 + j*512,
             swap=lambda ni: ni == 2, bpos=bpos, rpg=rpg)
    g.run()
    qs = math.log2(math.e) / math.sqrt(32.0)
    import struct
    k(f"s_mov_b32 s37, {hex(struct.unpack('<I', struct.pack('<f', qs))[0])}")
    for ni in (1, 2, 0):
        for mi in range(2):
            a = acc0 + 16*(mi*3+ni)
            if ni == 0:
                for r in range(16): k(f"v_mul_f32 v{a+r}, s37, v{a+r}")
            for r in range(8): k(f"v_cvt_pk_bf16_f32 v{a+r}, v{a+2*r}, v{a+2*r+1}")
            for j in range(2):
                k(f"buffer_store_dwordx4 {vr(a+4*j, 4)}, v{vO}, s[8:11], s{34+ni} offen offset:{mi*2048 + j*1024}{ST}")
    if STAMP: stamp(k); k("s_waitcnt vmcnt(0)"); stamp_out(k, 6, 4)
    tail(k)
    return k

WS_XS, WS_CS = 0x0, 0x40000
def k_qkv2(S=4, FS=9, SIG=3, bpos=2, rpg=2, ra=5, rb=9):
    XB, WBY = 16384, 24576
    STG = XB + WBY
    G = 1
    OOB = 0x40000000
    k = Kern("qkv_kernel", (256, 1, 1), (512, 1, 1), S * STG, vgpr=256)
    head(k, 256, [("x", 24), ("wqkv", 4), ("ws", 6), ("dbg", 26), ("wo", 28)])
    tile_map_4x8(k, 30, 31)
    k(f"""
    s_mul_i32 s59, s30, {ra}
    s_mul_i32 s58, s31, {rb}
    s_add_u32 s59, s59, s58
    s_and_b32 s59, s59, 15
    s_cmp_ge_u32 s3, 4
    s_cbranch_scc0 qkv_comp
    """)
    nst0 = k.nst
    k(f"""
    s_sub_u32 s3, s3, 4
    s_lshl_b32 s32, s30, 2
    s_add_u32 s32, s32, s3
    s_lshl_b32 s33, s32, 16
    v_lshrrev_b32 v1, 3, v0
    v_lshlrev_b32 v1, 11, v1
    v_lshrrev_b32 v2, 4, v0
    v_and_b32 v3, 7, v0
    v_xor_b32 v2, v2, v3
    v_lshlrev_b32 v2, 4, v2
    v_add3_u32 v8, s33, v1, v2
    v_xor_b32 v9, 64, v8
    v_add_u32 v9, {8*2048}, v9
    v_add_u32 v10, {16*2048}, v8
    v_add_u32 v11, {16*2048}, v9
    """)
    w_lane_dma(k, 2, 3, 4, 6144)
    k("""
    s_mul_i32 s33, s3, 16*6144
    s_lshl_b32 s34, s31, 7
    s_add_u32 s33, s33, s34
    v_add_u32 v12, s33, v2
    """)
    for i in range(1, 6): k(f"v_add_u32 v{12+i}, {(i//3)*8*6144 + (i%3)*2048}, v12")
    k(f"""
    s_mov_b32 s58, 0
    s_lshl_b32 s40, s59, 7
    s_mul_i32 s41, s59, {64*6144}
    s_lshl_b32 s42, s3, 12
    s_mul_i32 s43, s3, 6144
    s_add_u32 s43, s43, {XB}
    s_mov_b32 s62, 0
    s_waitcnt lgkmcnt(0)
    """)
    srd(k, 8, 24, 0, 4 * MB)
    srd(k, 12, 4, 0, 6 * MB)
    pieces = [(8, 8+i, 40, 42, i*1024) for i in range(4)] + [(12, 12+i, 41, 43, i*1024) for i in range(6)]
    dma = Dma(k, pieces, S, STG, win_order(None, 15, None, [(40, 7), (41, ("mul", 64*6144))]))
    q = []
    def issue(st):
        for a in dma.issue(): k(a)
        q.extend([st] * 10)
    def wait(*tags):
        pos = max(i for i, t in enumerate(q) if t in tags)
        n = len(q) - 1 - pos
        k(f"s_waitcnt vmcnt({n})")
        del q[:pos + 1]
    stamp(k)
    issue(0); issue(1)
    stamp(k)
    srd(k, 16, 6, WS_XS, 0x80000)
    srd(k, 20, 26, 0, 256)
    srd(k, 44, 28, 0, 2 * MB)
    srd(k, 48, 6, WS_MU1, 0x8000)
    vL, vM, vSt = 20, 21, 22
    k(f"""
    v_lshlrev_b32 v{vL}, 4, v0
    s_lshl_b32 s33, s3, 12
    v_add_u32 v1, s33, v{vL}
    v_lshrrev_b32 v2, 2, v0
    v_cmp_eq_u32 vcc, s30, v2
    v_cndmask_b32 v{vM}, 0, 15, vcc
    s_lshr_b32 s34, s31, 2
    s_and_b32 s35, s31, 3
    s_lshl_b32 s35, 1, s35
    v_and_b32 v2, 3, v0
    v_mov_b32 v3, s35
    v_cmp_eq_u32 vcc, s34, v2
    v_cndmask_b32 v3, 0, v3, vcc
    v_or_b32 v{vM}, v{vM}, v3
    v_lshlrev_b32 v2, 6, v2
    v_lshrrev_b32 v3, 3, v0
    v_lshlrev_b32 v3, 3, v3
    v_and_b32 v{vSt}, 4, v0
    v_add3_u32 v{vSt}, v{vSt}, v2, v3
    s_lshl_b32 s36, s32, 12
    s_lshl_b32 s37, s59, 8
    s_add_u32 s37, s37, s36
    s_lshl_b32 s38, s31, 2
    s_add_u32 s38, s38, s3
    s_lshl_b32 s38, s38, 12
    s_add_u32 s38, s38, {WS_CS}
    s_cmp_eq_u32 s3, 3
    s_cselect_b32 s38, {OOB}, s38
    """)
    wait(0)
    R = 24
    for i in range(4): k(f"ds_read_b128 {vr(R+4*i, 4)}, v1 offset:{i*1024}")
    stamp(k)
    k("s_barrier")
    stamp(k)
    A = 40
    def xstats():
        k("s_waitcnt lgkmcnt(0)")
        for j in range(4):
            for i in range(4):
                k(f"v_lshlrev_b32 v{48+2*i}, 16, v{R+4*i+j}")
                k(f"v_and_b32 v{49+2*i}, 0xffff0000, v{R+4*i+j}")
            for i in range(4):
                if j == 0:
                    k(f"v_add_f32 v{A+i}, v{48+2*i}, v{49+2*i}")
                    k(f"v_mul_f32 v{A+4+i}, v{48+2*i}, v{48+2*i}")
                else:
                    k(f"v_add_f32 v{A+i}, v{A+i}, v{48+2*i}")
                    k(f"v_fmac_f32 v{A+4+i}, v{48+2*i}, v{48+2*i}")
            for i in range(4):
                if j: k(f"v_add_f32 v{A+i}, v{A+i}, v{49+2*i}")
                k(f"v_fmac_f32 v{A+4+i}, v{49+2*i}, v{49+2*i}")
        for b in (0, 1, 2):
            for i in range(8): xlane_sum(k, A+i, None, (b,))
        k("v_and_b32 v2, 7, v0")
        for i in range(1, 8):
            k(f"v_cmp_eq_u32 vcc, {i}, v2")
            k(f"v_cndmask_b32 v{A}, v{A}, v{A+i}, vcc")
        k(f"buffer_store_dword v{A}, v{vSt}, s[16:19], s37 offen sc1")
        q.append("xs")
    GX, GC, F = 24, 40, 23
    def reduce4(b):
        for j in range(4):
            k(f"v_add_f32 v{b+j}, v{b+j}, v{b+4+j}")
            k(f"v_add_f32 v{b+8+j}, v{b+8+j}, v{b+12+j}")
        for j in range(4): k(f"v_add_f32 v{b+j}, v{b+j}, v{b+8+j}")
        for w in (16, 32):
            for j in range(4): k(f"v_mov_b32 v{b+4+j}, v{b+j}")
            for j in range(4): k(f"v_permlane{w}_swap_b32 v{b+j}, v{b+4+j}")
            for j in range(4): k(f"v_add_f32 v{b+j}, v{b+j}, v{b+4+j}")
    issued = 2
    for s in range(15):
        if s == FS:
            k(f"v_lshlrev_b32 v1, 2, v0")
            k(f"buffer_load_dword v{F}, v1, s[20:23], 0 offen sc1"); q.append("f")
        if s == FS + 2:
            k(f"""
            s_movk_i32 s39, 0x4000
            qkv_poll:
            v_and_b32 v{F}, v{F}, v{vM}
            v_cmp_ne_u32 vcc, v{F}, v{vM}
            s_sub_u32 s39, s39, 1
            s_cselect_b64 vcc, 0, vcc
            s_nop 0
            s_cbranch_vccz qkv_ready
            buffer_load_dword v{F}, v1, s[20:23], 0 offen sc1
            s_waitcnt vmcnt(0)
            s_branch qkv_poll
            qkv_ready:
            """)
            for j in range(4): k(f"buffer_load_dwordx4 {vr(GX+4*j, 4)}, v{vL}, s[16:19], s36 offen offset:{j*1024} sc1")
            for j in range(4): k(f"buffer_load_dwordx4 {vr(GC+4*j, 4)}, v{vL}, s[16:19], s38 offen offset:{j*1024} sc1")
            q.extend(["g"] * 8)
        tgt = min(16, s + S, issued + (1 if s == 0 else 2))
        while issued < tgt:
            issue(issued); issued += 1
        if s == 0: xstats()
        if s == 13:
            k(f"""
            s_lshl_b32 s34, s2, 2
            s_add_u32 s34, s34, s3
            s_lshl_b32 s35, s34, 11
            buffer_load_dwordx4 v[56:59], v{vL}, s[44:47], s35 offen
            buffer_load_dwordx4 v[60:63], v{vL}, s[44:47], s35 offen offset:1024
            """)
            q.extend(["rm"] * 2)
            reduce4(GX)
            k(f"""
            v_mul_f32 v{GX}, 0x3a800000, v{GX}
            v_mul_f32 v{GX+4}, 0x3a800000, v{GX+1}
            v_mul_f32 v{GX+1}, 0x3a800000, v{GX+2}
            v_mul_f32 v{GX+5}, 0x3a800000, v{GX+3}
            v_fma_f32 v{GX+4}, -v{GX}, v{GX}, v{GX+4}
            v_fma_f32 v{GX+5}, -v{GX+1}, v{GX+1}, v{GX+5}
            v_max_f32 v{GX+4}, 0, v{GX+4}
            v_max_f32 v{GX+5}, 0, v{GX+5}
            v_add_f32 v{GX+4}, 0x3727c5ac, v{GX+4}
            v_add_f32 v{GX+5}, 0x3727c5ac, v{GX+5}
            v_rsq_f32 v{GX+4}, v{GX+4}
            v_rsq_f32 v{GX+5}, v{GX+5}
            v_lshlrev_b32 v1, 3, v0
            s_lshl_b32 s33, s3, 7
            v_add_u32 v2, s33, v1
            v_mul_f32 v{GX+6}, -v{GX}, v{GX+4}
            v_mul_f32 v{GX+7}, -v{GX+1}, v{GX+5}
            s_lshl_b32 s33, s32, 7
            s_cmp_eq_u32 s31, 0
            s_cselect_b32 s33, s33, {OOB}
            s_mov_b64 exec, 0xffff
            ds_write_b64 v2, {vr(GX+4, 2)}
            ds_write_b64 v2, {vr(GX+6, 2)} offset:512
            buffer_store_dwordx2 {vr(GX, 2)}, v1, s[48:51], s33 offen
            s_mov_b64 exec, -1
            """)
            q.append("mu")
        if s == 14:
            reduce4(GC)
            k(f"""
            s_lshl_b32 s33, s3, 8
            v_add_u32 v2, s33, v{vL}
            s_mov_b64 exec, 0xffff
            ds_write_b128 v2, {vr(GC, 4)} offset:1024
            s_mov_b64 exec, -1
            s_waitcnt lgkmcnt(0)
            """)
        tags = [s + 1]
        if s == FS + 1: tags.append("f")
        if s == FS + 3: tags.append("g")
        wait(*tags)
        k("s_barrier")
    wait("rm")
    k("v_lshlrev_b32 v2, 16, v56")
    k("v_and_b32 v3, 0xffff0000, v56")
    for i in range(1, 8):
        k(f"v_lshlrev_b32 v4, 16, v{56+i}")
        k(f"v_and_b32 v5, 0xffff0000, v{56+i}")
        k("v_add_f32 v2, v2, v4")
        k("v_add_f32 v3, v3, v5")
    k("v_add_f32 v2, v2, v3")
    xlane_sum(k, 2, 3, (0, 1, 2, 3, 4, 5))
    k(f"""
    v_mul_f32 v2, 0x3a800000, v2
    s_lshl_b32 s34, s34, 2
    s_add_u32 s34, s34, {WS_RM - WS_MU1}
    v_mov_b32 v3, 0
    s_mov_b64 exec, 1
    buffer_store_dword v2, v3, s[48:51], s34 offen
    """)
    stamp_out(k, 6)
    k("s_endpgm")
    k.nst = nst0
    k("qkv_comp:")
    al = Alloc(8)
    acc0 = al(96, 4)
    xf = [al(8, 4), al(8, 4)]
    wf = [al(12, 4), al(12, 4)]
    cs = [al(16, 4), al(16, 4)]
    rV, mV = al(16, 4), al(16, 4)
    rp = al(4, 2); rq = al(4, 2); cV = al(2, 2)
    vXa = al(4); vWa, vXl, vWl, vO, vCS, vFl, vFd, vE, vE2 = (al() for _ in range(9))
    sel, csa = cs[0], cs[0] + 4
    k.vgpr = al.n
    k(f"""
    s_lshr_b32 s32, s3, 1
    s_and_b32 s33, s3, 1
    s_lshl_b32 s34, s32, 13
    v_lshlrev_b32 v{vO}, 4, v0
    v_and_b32 v1, 31, v0
    v_lshlrev_b32 v2, 7, v1
    v_bfe_u32 v3, v0, 1, 3
    v_lshrrev_b32 v4, 5, v0
    v_xor_b32 v3, v3, v4
    v_lshlrev_b32 v3, 4, v3
    v_add3_u32 v{vXl}, s34, v2, v3
    """)
    k(f"""
    v_lshlrev_b32 v{vE}, 4, v4
    v_lshlrev_b32 v{vE2}, 2, v1
    s_lshl_b32 s34, s32, 8
    s_lshl_b32 s35, s33, 7
    """)
    k(f"""
    v_cmp_gt_u32 vcc, 32, v0
    v_mov_b32 v5, {OOB}
    v_cndmask_b32 v{vCS}, v5, v{vE2}, vcc
    s_cmp_eq_u32 s32, 0
    s_cselect_b32 s44, 0, {OOB}
    v_add_u32 v{vCS}, s44, v{vCS}
    v_cmp_eq_u32 vcc, 0, v0
    v_cndmask_b32 v{vFl}, v5, 0, vcc
    s_cmp_eq_u32 s3, 0
    s_cselect_b32 s44, 0, {OOB}
    v_add_u32 v{vFl}, s44, v{vFl}
    s_and_b32 s44, s31, 3
    s_lshl_b32 s44, 1, s44
    v_mov_b32 v{vFd}, s44
    s_lshl_b32 s45, s30, 2
    s_lshr_b32 s44, s31, 2
    s_add_u32 s45, s45, s44
    s_lshl_b32 s45, s45, 2
    s_lshl_b32 s46, s31, 14
    s_lshl_b32 s44, s59, 8
    s_add_u32 s46, s46, s44
    s_add_u32 s46, s46, s35
    s_add_u32 s46, s46, {WS_CS}
    s_add_u32 s47, s46, 4096
    s_add_u32 s48, s46, 8192
    v_bfe_u32 v1, v0, 2, 1
    v_bfe_u32 v2, v0, 4, 1
    v_cmp_eq_u32 vcc, v1, v2
    v_mov_b32 v1, 0x3f803f80
    v_cndmask_b32 v{sel}, 0, v1, vcc
    v_mov_b32 v{sel+1}, v{sel}
    v_mov_b32 v{sel+2}, v{sel}
    v_mov_b32 v{sel+3}, v{sel}
    """)
    vR1, vC1, vR2, vC2 = 4, 5, 6, 7
    k(f"""
    v_add_u32 v{vR1}, s34, v{vE}
    v_add_u32 v{vC1}, s35, v{vE}
    v_add_u32 v{vR2}, s34, v{vE2}
    v_add_u32 v{vC2}, s35, v{vE2}
    """)
    w_lane_read(k, vWl, 2, 3, 3072, 32)
    k(f"""
    s_lshl_b32 s34, s33, 8
    s_add_u32 s34, s34, {XB}
    v_add_u32 v{vWl}, s34, v{vWl}
    v_mov_b32 v{vXa}, v{vXl}
    v_mov_b32 v{vWa}, v{vWl}
    s_mov_b32 s60, 0
    """)
    for kk in range(1, 4): k(f"v_xor_b32 v{vXa+kk}, {kk*32}, v{vXa}")
    for i in range(96): k(f"v_mov_b32 v{acc0+i}, 0")
    for i in range(12): k(f"v_mov_b32 v{csa+i}, 0")
    k(f"""
    s_lshl_b32 s34, s31, 1
    s_add_u32 s34, s34, s33
    s_lshl_b32 s34, s34, 17
    s_lshl_b32 s35, s30, 2
    s_lshl_b32 s36, s32, 1
    s_add_u32 s35, s35, s36
    s_lshl_b32 s35, s35, 11
    s_add_u32 s34, s34, s35
    s_add_u32 s35, s34, {4*MB}
    s_add_u32 s36, s34, {8*MB}
    s_waitcnt lgkmcnt(0)
    """)
    srd(k, 8, 6, WS_Q, 12 * MB)
    srd(k, 16, 6, WS_XS, 0x80000)
    srd(k, 20, 26, 0, 256)
    k("s_barrier")
    def barhook():
        k(f"""
        s_cmp_eq_u32 s61, {15 - SIG}
        s_cbranch_scc1 qkv_sig
        s_barrier
        qkv_sigdone:
        """)
    def xfill(step, g):
        if step == 1 and g == 0:
            return [f"buffer_store_dword v{csa+4*ni}, v{vCS}, s[16:19], s{46+ni} offen sc1" for ni in range(3)]
        return []
    tr = []
    def rd(a): tr.append((a, ("e", len(tr))))
    for mi in range(2):
        rd(f"ds_read_b32 v{rp+2*mi}, v{vR2} offset:{mi*128}")
        rd(f"ds_read_b32 v{rp+2*mi+1}, v{vR2} offset:{512 + mi*128}")
    for ni in (1, 0):
        for g in range(4): rd(f"ds_read_b128 {vr(cs[ni]+4*g, 4)}, v{vC1} offset:{1024 + ni*256 + g*32}")
    rd(f"ds_read_b32 v{cV}, v{vC2} offset:{1024 + 512}")
    for g in range(4):
        rd(f"ds_read_b128 {vr(rV+4*g, 4)}, v{vR1} offset:{g*32}")
        rd(f"ds_read_b128 {vr(mV+4*g, 4)}, v{vR1} offset:{512 + g*32}")
    g = Gemm(k, 2, 3, 4, G, S, 16, STG, lambda mi, ni: acc0 + 16*(mi*3+ni), xf, wf, vXa, vWa, vXl, vWl,
             xoff=lambda mi, kk: mi*4096,
             woff=lambda ni, kk, j: kk*6144 + ni*1024 + j*512,
             swap=lambda ni: ni == 2, bpos=bpos, rpg=rpg, xswz=True, peel=2,
             xm=lambda ni, w: f"v_mfma_f32_16x16x32_bf16 {vr(csa+4*ni, 4)}, {vr(sel, 4)}, {w}, {vr(csa+4*ni, 4)}",
             xfill=xfill, barhook=barhook, tailreads=tr)
    g.run()
    qs = math.log2(math.e) / math.sqrt(32.0)
    import struct
    k(f"s_mov_b32 s37, {hex(struct.unpack('<I', struct.pack('<f', qs))[0])}")
    rV1, mV1 = xf[0], xf[0] + 16
    for gg in range(4):
        rd(f"ds_read_b128 {vr(rV1+4*gg, 4)}, v{vR1} offset:{128 + gg*32}")
        rd(f"ds_read_b128 {vr(mV1+4*gg, 4)}, v{vR1} offset:{512 + 128 + gg*32}")
    for a, t in tr[-8:]:
        k(a); g.fifo.issue(t)
    def need(lo, hi): g.fifo.need({("e", i) for i in range(lo, hi)})
    need(0, 8)
    for r in range(4): k(f"v_mul_f32 v{rq+r}, s37, v{rp+r}")
    for ni in (1, 0, 2):
        for mi in range(2):
            a = acc0 + 16*(mi*3+ni)
            if ni == 0: need(8, 12)
            if ni == 2: need(12, 21) if mi == 0 else need(21, 29)
            p = vr((rq if ni == 0 else rp) + 2*mi, 2)
            for r in range(0, 16, 2):
                if ni < 2: k(f"v_pk_mul_f32 {vr(a+r, 2)}, {vr(a+r, 2)}, {p} op_sel_hi:[1,0]")
                else:      k(f"v_pk_mul_f32 {vr(a+r, 2)}, {vr(a+r, 2)}, {vr((rV1 if mi else rV)+r, 2)}")
            for r in range(0, 16, 2):
                if ni < 2: k(f"v_pk_fma_f32 {vr(a+r, 2)}, {vr(cs[ni]+r, 2)}, {p}, {vr(a+r, 2)} op_sel:[0,1,0] op_sel_hi:[1,1,1]")
                else:      k(f"v_pk_fma_f32 {vr(a+r, 2)}, {vr((mV1 if mi else mV)+r, 2)}, {vr(cV, 2)}, {vr(a+r, 2)} op_sel_hi:[1,0,1]")
            for r in range(8): k(f"v_cvt_pk_bf16_f32 v{a+r}, v{a+2*r}, v{a+2*r+1}")
            for j in range(2):
                k(f"buffer_store_dwordx4 {vr(a+4*j, 4)}, v{vO}, s[8:11], s{34+ni} offen offset:{mi*2048 + j*1024}{ST}")
    if STAMP: stamp(k); k("s_waitcnt vmcnt(0)"); stamp_out(k, 6, 4)
    k(f"""
    s_endpgm
    qkv_sig:
    s_waitcnt vmcnt(0)
    s_barrier
    buffer_atomic_or v{vFd}, v{vFl}, s[20:23], s45 offen sc1
    s_branch qkv_sigdone
    """)
    tail(k)
    return k

def k_n64(name, K, wname, xoff_ws, S=6, G=4, bpos=0, rpg=3):
    XB, WBY = 16384, 8192
    STG = XB + WBY
    nsteps = K // 64
    is_wo = name == "wo"
    k = Kern(name + "_kernel", (256, 1, 1), (512, 1, 1), S * STG, vgpr=256)
    head(k, 256, [(wname, 4), ("ws", 6), ("x" if is_wo else "out", 24)])
    tile_map_4x8(k, 30, 31)
    k("s_waitcnt lgkmcnt(0)")
    k("s_cmp_ge_u32 s3, 4")
    k(f"s_cbranch_scc0 {name}_comp")
    srd(k, 8, 6, xoff_ws, 2048 * K * 2)
    srd(k, 12, 4, 0, K * 2048)
    k("s_sub_u32 s3, s3, 4")
    k(f"""
    s_lshl_b32 s32, s30, 2
    s_add_u32 s32, s32, s3
    s_mul_i32 s32, s32, {K//16*1024}
    v_lshlrev_b32 v1, 4, v0
    v_add_u32 v1, s32, v1
    """)
    for i in range(4): k(f"v_add_u32 v{8+i}, {i*1024}, v1")
    w_lane_dma(k, 2, 3, 4, 2048)
    k("""
    s_lshl_b32 s33, s3, 15
    s_lshl_b32 s34, s31, 7
    s_add_u32 s33, s33, s34
    v_add_u32 v12, s33, v2
    v_add_u32 v13, 8*2048, v12
    """)
    if os.environ.get("WLIN"):
        k("s_mul_i32 s33, s31, 16*8192\ns_lshl_b32 s34, s3, 11\ns_add_u32 s33, s33, s34\nv_lshlrev_b32 v2, 4, v0\nv_add_u32 v12, s33, v2\nv_add_u32 v13, 1024, v12")
    k(f"""
    s_mov_b32 s40, 0
    s_mov_b32 s41, 0
    s_lshl_b32 s42, s3, 12
    s_lshl_b32 s43, s3, 11
    s_add_u32 s43, s43, {XB}
    s_mov_b32 s62, 0
    """)
    pieces = [(8, 8+i, 40, 42, i*1024) for i in range(4)] + [(12, 12+i, 41, 43, i*1024) for i in range(2)]
    dma = Dma(k, pieces, S, STG, [(40, 4096), (41, 8192 if os.environ.get('WLIN') else 64*2048)])
    loader_loop(k, dma, S, 6, nsteps)
    k(f"{name}_comp:")
    al = Alloc(8)
    acc0 = al(32, 4)
    xf = [al(4*G, 4), al(4*G, 4)]
    wf = [al(8*G, 4), al(8*G, 4)]
    res = al(16, 4)
    mup = al(17, 4) if is_wo else None
    vXa, vWa, vXl, vWl, vT, vR = al(), al(), al(), al(), al(), al()
    k.vgpr = al.n
    k(f"""
    s_lshl_b32 s32, s30, 2
    s_add_u32 s32, s32, s3
    v_lshlrev_b32 v{vT}, 4, v0
    """)
    k(f"""
    v_and_b32 v2, 31, v0
    v_lshlrev_b32 v2, 11, v2
    v_lshrrev_b32 v3, 5, v0
    v_lshlrev_b32 v3, 4, v3
    v_add_u32 v{vR}, v2, v3
    s_lshl_b32 s33, s32, 16
    s_lshl_b32 s34, s31, 7
    s_add_u32 s33, s33, s34
    """)
    k(f"""
    s_lshl_b32 s34, s32, 6
    s_lshl_b32 s35, s31, 2
    s_add_u32 s34, s34, s35
    s_lshl_b32 s34, s34, 10
    """)
    srd(k, 8, 24, 0, 4 * MB)
    srd(k, 12, 6, WS_H, 4 * MB)
    for q in range(4):
        if is_wo: k(f"buffer_load_dwordx4 {vr(res+4*q, 4)}, v{vR}, s[8:11], s33 offen offset:{q*32}")
        else:     k(f"buffer_load_dwordx4 {vr(res+4*q, 4)}, v{vT}, s[12:15], s34 offen offset:{q*1024}")
    if is_wo:
        srd(k, 16, 6, WS_MU1, 0x10000 + 0x40000)
        k(f"""
        s_lshl_b32 s35, s32, 12
        s_add_u32 s35, s35, {WS_MUP - WS_MU1}
        s_lshl_b32 s36, s32, 7
        v_and_b32 v2, 31, v0
        v_lshlrev_b32 v2, 2, v2
        """)
        for q in range(4):
            k(f"buffer_load_dwordx4 {vr(mup+4*q, 4)}, v{vT}, s[16:19], s35 offen offset:{q*1024}")
        k(f"buffer_load_dword v{mup+16}, v2, s[16:19], s36 offen")
    k(f"""
    s_lshl_b32 s35, s3, 12
    v_add_u32 v{vXl}, s35, v{vT}
    """)
    w_lane_read(k, vWl, 2, 3, 1024, 32)
    k(f"""
    v_add_u32 v{vWl}, {XB}, v{vWl}
    v_mov_b32 v{vXa}, v{vXl}
    v_mov_b32 v{vWa}, v{vWl}
    s_mov_b32 s60, 0
    """)
    for i in range(32): k(f"v_mov_b32 v{acc0+i}, 0")
    k("s_barrier")
    g = Gemm(k, 1, 2, 4, G, S, nsteps, STG, lambda mi, ni: acc0 + 16*ni, xf, wf, vXa, vWa, vXl, vWl,
             xoff=lambda mi, kk: kk*1024,
             woff=lambda ni, kk, j: kk*2048 + j*512 + ni*256, bpos=bpos, rpg=rpg)
    g.run()
    k("s_waitcnt vmcnt(0)")
    T = xf[0]
    if is_wo:
        for i in range(1, 16): k(f"v_add_f32 v{mup}, v{mup}, v{mup+i}")
        xlane_sum(k, mup, 4, (5,))
        k(f"v_add_f32 v{mup}, v{mup}, v{mup+16}")
    for i in range(16):
        k(f"v_lshlrev_b32 v{T+(2*i)%8}, 16, v{res+i}")
        k(f"v_and_b32 v{T+(2*i+1)%8}, 0xffff0000, v{res+i}")
        k(f"v_add_f32 v{acc0+2*i}, v{acc0+2*i}, v{T+(2*i)%8}")
        k(f"v_add_f32 v{acc0+2*i+1}, v{acc0+2*i+1}, v{T+(2*i+1)%8}")
        k(f"v_cvt_pk_bf16_f32 v{res+i}, v{acc0+2*i}, v{acc0+2*i+1}")
        if i % 4 == 3:
            q = i // 4
            if is_wo: k(f"buffer_store_dwordx4 {vr(res+4*q, 4)}, v{vT}, s[12:15], s34 offen offset:{q*1024}{ST}")
            else:     k(f"buffer_store_dwordx4 {vr(res+4*q, 4)}, v{vR}, s[8:11], s33 offen offset:{q*32}")
    if is_wo:
        srd(k, 8, 6, WS_HC, 4 * MB)
        srd(k, 16, 6, WS_STAT, 64 * 2048)
        H2 = wf[0]
        for i in range(32): k(f"v_sub_f32 v{acc0+i}, v{acc0+i}, v{mup}")
        k(f"v_mul_f32 v2, v{acc0}, v{acc0}")
        k(f"v_mul_f32 v3, v{acc0+1}, v{acc0+1}")
        for i in range(16):
            k(f"v_cvt_pk_bf16_f32 v{H2+i}, v{acc0+2*i}, v{acc0+2*i+1}")
            if i:
                k(f"v_fmac_f32 v2, v{acc0+2*i}, v{acc0+2*i}")
                k(f"v_fmac_f32 v3, v{acc0+2*i+1}, v{acc0+2*i+1}")
            if i % 4 == 3:
                k(f"buffer_store_dwordx4 {vr(H2+i-3, 4)}, v{vT}, s[8:11], s34 offen offset:{(i//4)*1024}{ST}")
        k("v_add_f32 v2, v2, v3")
        xlane_sum(k, 2, 4, (5,))
        k(f"""
        s_lshl_b32 s35, s32, 11
        s_lshr_b32 s36, s31, 2
        s_lshl_b32 s36, s36, 9
        s_add_u32 s35, s35, s36
        s_and_b32 s36, s31, 3
        s_lshl_b32 s36, s36, 2
        s_add_u32 s35, s35, s36
        s_mov_b32 exec_hi, 0
        buffer_store_dword v2, v{vT}, s[16:19], s35 offen
        """)
    if STAMP: stamp(k); k("s_waitcnt vmcnt(0)"); stamp_out(k, 6, 4)
    tail(k)
    return k

def win_order(split, m0, m1, sh):
    def adv():
        o = ["s_add_u32 s58, s58, 1", "s_add_u32 s56, s58, s59"]
        if split is not None:
            o += [f"s_cmp_lt_u32 s58, {split}", f"s_cselect_b32 s57, {m0}, {m1}",
                  "s_and_b32 s56, s56, s57", "s_andn2_b32 s57, s58, s57"]
        else:
            o += [f"s_and_b32 s56, s56, {m0}", f"s_andn2_b32 s57, s58, {m0}"]
        o.append("s_or_b32 s56, s56, s57")
        for r, x in sh:
            o.append(f"s_mul_i32 s{r}, s56, {x[1]}" if isinstance(x, tuple) else f"s_lshl_b32 s{r}, s56, {x}")
        return o
    return adv

def k_down2(S=5, G=2, bpos=0, rpg=3, rot=True):
    XB, WBY = 16384, 16384
    STG = XB + WBY
    nsteps = 28
    name = "down"
    k = Kern(name + "_kernel", (256, 1, 1), (512, 1, 1), S * STG, vgpr=256)
    head(k, 256, [("wd", 4), ("ws", 6), ("out", 24)])
    k("""
    s_lshr_b32 s30, s90, 1
    s_lshl_b32 s30, s30, 2
    s_lshr_b32 s92, s91, 3
    s_add_u32 s30, s30, s92
    s_and_b32 s31, s91, 7
    s_and_b32 s29, s90, 1
    s_waitcnt lgkmcnt(0)
    s_cmp_ge_u32 s3, 4
    s_cbranch_scc0 down_comp
    """)
    srd(k, 8, 6, WS_ACT, 14 * MB)
    srd(k, 12, 4, 0, 7 * MB)
    k(f"""
    s_sub_u32 s3, s3, 4
    s_xor_b32 s32, s3, s29
    s_xor_b32 s32, s32, 1
    s_lshl_b32 s33, s30, 2
    s_add_u32 s32, s32, s33
    s_mul_i32 s32, s32, {224*1024}
    s_mul_i32 s33, s29, {112*1024}
    s_add_u32 s32, s32, s33
    v_lshlrev_b32 v1, 4, v0
    v_add_u32 v8, s32, v1
    """)
    for i in range(1, 4): k(f"v_add_u32 v{8+i}, {i*1024}, v8")
    w_lane_dma(k, 2, 3, 4, 2048)
    k(f"""
    s_lshl_b32 s33, s3, 15
    s_lshl_b32 s34, s31, 8
    s_add_u32 s33, s33, s34
    s_mul_i32 s34, s29, {1792*2048}
    s_add_u32 s33, s33, s34
    v_add_u32 v12, s33, v2
    v_add_u32 v13, 8*2048, v12
    v_add_u32 v14, 128, v12
    v_add_u32 v15, 128, v13
    s_lshl_b32 s59, s92, 1
    s_add_u32 s59, s59, s31
    s_mov_b32 s58, 0
    s_and_b32 s56, s59, {7 if rot else 0}
    s_lshl_b32 s40, s56, 12
    s_lshl_b32 s41, s56, 17
    s_lshl_b32 s42, s3, 12
    s_lshl_b32 s43, s3, 11
    s_add_u32 s43, s43, {XB}
    s_mov_b32 s62, 0
    """)
    if os.environ.get("WLIN"):
        k("s_lshl_b32 s33, s31, 1\ns_add_u32 s33, s33, s29\ns_mul_i32 s33, s33, 28*16384\ns_lshl_b32 s34, s3, 12\ns_add_u32 s33, s33, s34\nv_lshlrev_b32 v2, 4, v0\nv_add_u32 v12, s33, v2\nv_add_u32 v13, 1024, v12\nv_add_u32 v14, 2048, v12\nv_add_u32 v15, 3072, v12")
    pieces = [(8, 8+i, 40, 42, i*1024) for i in range(4)] + [(12, 12+i, 41, 43, (i&1)*1024 + (i>>1)*8192) for i in range(4)]
    dma = Dma(k, pieces, S, STG, win_order(24, 7, 3, [(40, 12), (41, 17)]) if rot else [(40, 4096), (41, 16384 if os.environ.get('WLIN') else 64*2048)])
    if os.environ.get('NOADV'): dma.steps = []
    if os.environ.get('XROT'):
        k(f"""
        s_lshr_b32 s58, s90, 1
        s_mul_i32 s58, s58, 7
        s_lshl_b32 s40, s58, 12
        s_lshl_b32 s41, s58, {14 if os.environ.get('WLIN') else 17}
        """)
        dma.steps = lambda: ["s_add_u32 s58, s58, 1", "s_cmp_eq_u32 s58, 28", "s_cselect_b32 s58, 0, s58",
                             "s_lshl_b32 s40, s58, 12", f"s_lshl_b32 s41, s58, {14 if os.environ.get('WLIN') else 17}"]
    if os.environ.get('WRAP'):
        w = os.environ['WRAP']
        dma.steps = lambda: ["s_add_u32 s40, s40, 4096", "s_add_u32 s41, s41, 64*2048"] + (["s_and_b32 s40, s40, 0x3fff"] if 'x' in w else []) + (["s_and_b32 s41, s41, 0x7ffff"] if 'w' in w else [])
    if os.environ.get('HALFDMA'): dma.pieces = pieces[:4]
    loader_loop(k, dma, S, len(dma.pieces), nsteps)
    k("down_comp:")
    al = Alloc(8)
    acc0 = al(64, 4)
    xf = [al(8*G, 4), al(8*G, 4)]
    wf = [al(8*G, 4), al(8*G, 4)]
    res = al(16, 4)
    rx = al(32, 4)
    vXa, vWa, vXl, vWl, vT, vR = al(), al(), al(), al(), al(), al()
    k.vgpr = al.n
    k(f"""
    s_lshr_b32 s32, s3, 1
    s_and_b32 s33, s3, 1
    s_lshl_b32 s34, s30, 2
    s_lshl_b32 s35, s32, 1
    s_add_u32 s34, s34, s35
    s_add_u32 s34, s34, s29
    v_lshlrev_b32 v{vT}, 4, v0
    s_lshl_b32 s35, s34, 6
    s_lshl_b32 s36, s31, 3
    s_add_u32 s35, s35, s36
    s_lshl_b32 s36, s33, 2
    s_add_u32 s35, s35, s36
    s_lshl_b32 s35, s35, 10
    """)
    srd(k, 12, 6, WS_H, 4 * MB)
    for q in range(4):
        k(f"buffer_load_dwordx4 {vr(res+4*q, 4)}, v{vT}, s[12:15], s35 offen offset:{q*1024}")
    srd(k, 8, 24, 0, 4 * MB)
    srd(k, 16, 6, WS_EX, 8 * MB)
    k(f"""
    v_and_b32 v2, 31, v0
    v_lshlrev_b32 v2, 11, v2
    v_lshrrev_b32 v3, 5, v0
    v_lshlrev_b32 v3, 4, v3
    v_add_u32 v{vR}, v2, v3
    s_lshl_b32 s34, s34, 16
    s_lshl_b32 s36, s31, 8
    s_add_u32 s34, s34, s36
    s_lshl_b32 s36, s33, 7
    s_add_u32 s34, s34, s36
    s_lshl_b32 s36, s2, 2
    s_add_u32 s36, s36, s3
    s_lshl_b32 s36, s36, 13
    s_xor_b32 s37, s36, 0x8000
    s_add_u32 s38, s36, 4096
    s_add_u32 s39, s37, 4096
    s_lshl_b32 s32, s32, 13
    v_add_u32 v{vXl}, s32, v{vT}
    """)
    w_lane_read(k, vWl, 2, 3, 1024, 32)
    k(f"""
    s_lshl_b32 s33, s33, 13
    s_add_u32 s33, s33, {XB}
    v_add_u32 v{vWl}, s33, v{vWl}
    v_mov_b32 v{vXa}, v{vXl}
    v_mov_b32 v{vWa}, v{vWl}
    s_mov_b32 s60, 0
    """)
    for i in range(64): k(f"v_mov_b32 v{acc0+i}, 0")
    k("s_barrier")
    g = Gemm(k, 2, 2, 4, G, S, nsteps, STG, lambda mi, ni: acc0 + 32*mi + 16*ni, xf, wf, vXa, vWa, vXl, vWl,
             xoff=lambda mi, kk: mi*4096 + kk*1024,
             woff=lambda ni, kk, j: kk*2048 + j*512 + ni*256, bpos=bpos, rpg=rpg)
    g.run()
    for q in range(8):
        k(f"buffer_store_dwordx4 {vr(acc0+4*q, 4)}, v{vT}, s[16:19], s{36 if q < 4 else 38} offen offset:{(q&3)*1024} sc1")
    k(f"""
    s_movk_i32 s40, 0x4000
    down_poll:
    buffer_load_dword v2, v{vT}, s[16:19], s39 offen offset:3084 sc1
    s_waitcnt vmcnt(0)
    v_cmp_eq_u32 vcc, -1, v2
    s_sub_u32 s40, s40, 1
    s_cselect_b64 vcc, 0, vcc
    s_nop 0
    s_cbranch_vccnz down_poll
    s_max_i32 s40, s40, 0
    """)
    for q in range(8):
        k(f"buffer_load_dwordx4 {vr(rx+4*q, 4)}, v{vT}, s[16:19], s{37 if q < 4 else 39} offen offset:{(q&3)*1024} sc1")
    T = xf[0]
    A = acc0 + 32
    k("s_waitcnt vmcnt(0)")
    k(f"v_max3_u32 v2, v{rx}, v{rx+1}, v{rx+2}")
    k(f"v_max3_u32 v3, v{rx+3}, v{rx+4}, v{rx+5}")
    for i in range(6, 30, 4):
        k(f"v_max3_u32 v2, v{rx+i}, v{rx+i+1}, v2")
        k(f"v_max3_u32 v3, v{rx+i+2}, v{rx+i+3}, v3")
    k(f"v_max3_u32 v2, v{rx+30}, v{rx+31}, v2")
    k(f"""
    v_max_u32 v2, v2, v3
    v_cmp_eq_u32 vcc, -1, v2
    s_sub_u32 s40, s40, 1
    s_cselect_b64 vcc, 0, vcc
    s_nop 0
    s_cbranch_vccnz down_poll
    """)
    stamp(k)
    for i in range(16):
        k(f"v_lshlrev_b32 v{T+(2*i)%8}, 16, v{res+i}")
        k(f"v_and_b32 v{T+(2*i+1)%8}, 0xffff0000, v{res+i}")
        k(f"v_add_f32 v{A+2*i}, v{A+2*i}, v{rx+2*i}")
        k(f"v_add_f32 v{A+2*i+1}, v{A+2*i+1}, v{rx+2*i+1}")
        k(f"v_add_f32 v{A+2*i}, v{A+2*i}, v{T+(2*i)%8}")
        k(f"v_add_f32 v{A+2*i+1}, v{A+2*i+1}, v{T+(2*i+1)%8}")
        k(f"v_cvt_pk_bf16_f32 v{res+i}, v{A+2*i}, v{A+2*i+1}")
        if i % 4 == 3:
            q = i // 4
            k(f"buffer_store_dwordx4 {vr(res+4*q, 4)}, v{vR}, s[8:11], s34 offen offset:{q*32}")
    if STAMP: stamp(k); k("s_waitcnt vmcnt(0)"); stamp_out(k, 6, 4)
    tail(k)
    return k

def k_gu(S=5, bpos=2, rpg=2):
    XB = 16384
    GOFF = XB
    UOFF = XB + 7168 + 32
    STG = XB + 14336 + 256
    k = Kern("gu_kernel", (256, 1, 1), (512, 1, 1), S * STG, vgpr=256)
    head(k, 256, [("wg", 4), ("wu", 6), ("ws", 24)])
    k("""
    s_and_b32 s30, s90, 6
    s_lshr_b32 s92, s91, 4
    s_add_u32 s30, s30, s92
    s_and_b32 s31, s90, 1
    s_lshl_b32 s31, s31, 4
    s_and_b32 s92, s91, 15
    s_add_u32 s31, s31, s92
    """ if os.environ.get("GUMAP") == "P" else """
    s_and_b32 s30, s90, 1
    s_lshl_b32 s30, s30, 2
    s_lshr_b32 s92, s91, 3
    s_add_u32 s30, s30, s92
    s_lshr_b32 s31, s90, 1
    s_lshl_b32 s31, s31, 3
    s_and_b32 s92, s91, 7
    s_add_u32 s31, s31, s92
    """)
    k("""
    s_and_b32 s32, s3, 3
    s_mul_i32 s33, s31, 112
    s_and_b32 s34, s31, 1
    s_lshl_b32 s35, s34, 4
    s_add_u32 s35, s35, s33
    s_cmp_eq_u32 s34, 0
    s_cselect_b32 s36, 96, 0
    s_add_u32 s36, s36, s33
    s_waitcnt lgkmcnt(0)
    """)
    srd(k, 8, 24, WS_HC, 4 * MB)
    srd(k, 16, 24, WS_STAT, 64 * 2048)
    al = Alloc(8)
    acc0 = al(128, 4)
    xf = [al(8, 4), al(8, 4)]
    wf = [al(16, 4), al(16, 4)]
    vXa, vWa, vXl, vWl, vT = al(), al(), al(), al(), al()
    vD = al(5)
    vS = al(4)
    k.vgpr = al.n
    k(f"v_lshlrev_b32 v{vT}, 4, v0")
    k(f"""
    s_lshl_b32 s37, s30, 3
    s_lshl_b32 s38, s32, 1
    s_add_u32 s37, s37, s38
    s_lshl_b32 s38, s37, 11
    s_cmp_ge_u32 s3, 4
    s_cbranch_scc1 gu_b
    """)
    def path(isB):
        Nt = 3 if isB else 4
        t0 = 4 if isB else 0
        k.nst = 2
        if not isB:
            for i in range(3):
                k(f"""
                s_mul_i32 s44, s3, 3
                s_add_u32 s44, s44, {i}
                s_lshr_b32 s45, s44, 1
                s_and_b32 s44, s44, 1
                s_lshl_b32 s46, s30, 3
                s_add_u32 s45, s45, s46
                s_lshl_b32 s45, s45, 16
                s_lshl_b32 s44, s44, 10
                s_add_u32 s45, s45, s44
                v_add_u32 v{vD+i}, s45, v{vT}
                """)
            k("s_mul_i32 s42, s3, 3072")
            pieces = [(8, vD+i, 40, 42, i*1024) for i in range(3)]
            steps = [(40, 2048)]
            npc = 3
        else:
            k(f"""
            s_add_u32 s44, s32, 12
            s_lshr_b32 s45, s44, 1
            s_and_b32 s44, s44, 1
            s_lshl_b32 s46, s30, 3
            s_add_u32 s45, s45, s46
            s_lshl_b32 s45, s45, 16
            s_lshl_b32 s44, s44, 10
            s_add_u32 s45, s45, s44
            v_add_u32 v{vD}, s45, v{vT}
            s_add_u32 s42, s32, 12
            s_lshl_b32 s42, s42, 10
            s_cmp_ge_u32 s32, 2
            s_cselect_b32 s4, s6, s4
            s_cselect_b32 s5, s7, s5
            s_cselect_b32 s43, {UOFF-GOFF}, 0
            s_add_u32 s43, s43, {GOFF}
            s_and_b32 s47, s32, 1
            s_lshl_b32 s44, s47, 12
            s_add_u32 s43, s43, s44
            s_lshl_b32 s46, s47, 8
            """)
            srd(k, 12, 4, 0, 7 * MB)
            for i in range(4):
                d = vD + 1 + i
                k(f"""
                v_add_u32 v4, s46, v0
                v_add_u32 v4, {64*i}, v4
                v_mul_u32_u24 v5, 586, v4
                v_lshrrev_b32 v5, 16, v5
                v_mul_u32_u24 v6, 112, v5
                v_sub_u32 v4, v4, v6
                v_lshlrev_b32 v5, 3, v5
                v_bfe_u32 v6, v4, 2, 2
                v_add_u32 v5, v5, v6
                v_lshrrev_b32 v6, 4, v4
                v_and_b32 v4, 3, v4
                v_cmp_le_u32 vcc, 3, v6
                v_cndmask_b32 v7, 0, 1, vcc
                v_mul_u32_u24 v1, 3, v7
                v_sub_u32 v1, v6, v1
                v_lshlrev_b32 v1, 2, v1
                v_add_u32 v1, v1, v4
                v_lshlrev_b32 v1, 3, v1
                v_add_u32 v1, s35, v1
                v_cmp_eq_u32 vcc, 6, v6
                v_lshrrev_b32 v6, 1, v4
                v_cndmask_b32 v7, v7, v6, vcc
                v_and_b32 v4, 1, v4
                v_lshlrev_b32 v4, 3, v4
                v_add_u32 v4, s36, v4
                v_cndmask_b32 v1, v1, v4, vcc
                v_lshlrev_b32 v7, 2, v7
                v_add_u32 v5, v5, v7
                v_mul_u32_u24 v5, 7168, v5
                v_lshlrev_b32 v1, 1, v1
                v_add_u32 v{d}, v5, v1
                """)
            k(f"""
            s_cmp_eq_u32 s47, 0
            s_cselect_b32 s48, 0, 0x40000000
            v_add_u32 v{vD+4}, s48, v{vD+4}
            s_cselect_b32 s49, s43, {S*STG - 3072}
            """)
            pieces = [(8, vD, 40, 42, 0)] + [(12, vD+1+i, 41, 43, i*1024) for i in range(3)] + [(12, vD+4, 41, 49, 3072)]
            steps = [(40, 2048), (41, 32*7168)]
            npc = 5
        k("s_mov_b32 s40, 0\ns_mov_b32 s41, 0\ns_mov_b32 s62, 0\ns_mov_b32 s60, 0")
        dma = Dma(k, pieces, S, STG, steps)
        if isB:
            iss0 = dma.issue
            def iss():
                o = iss0()
                o.append("s_cmp_eq_u32 s47, 0")
                o.append(f"s_cselect_b32 s49, s43, {S*STG - 3072}")
                return o
            dma.issue = iss
        stamp(k)
        for s in range(2):
            for a in dma.issue(): k(a)
        for q in range(4):
            k(f"buffer_load_dwordx4 {vr(wf[1] + 4*q, 4)}, v{vT}, s[16:19], s38 offen offset:{q*1024}")
        stamp(k)
        k(f"""
        s_lshl_b32 s44, s32, 12
        v_add_u32 v{vXl}, s44, v{vT}
        """)
        w_lane_read(k, vWl, 4, 5, 1792, UOFF - GOFF)
        k(f"""
        v_add_u32 v{vWl}, {GOFF}, v{vWl}
        v_mov_b32 v{vXa}, v{vXl}
        v_mov_b32 v{vWa}, v{vWl}
        """)
        for i in range(32 * Nt): k(f"v_mov_b32 v{acc0+i}, 0")
        k("s_waitcnt vmcnt(0)")
        for mi in range(2):
            a = wf[1] + 8 * mi
            for q in range(1, 8): k(f"v_add_f32 v{a}, v{a}, v{a+q}")
            xlane_sum(k, a, 4, (5,))
            k(f"""
            v_mov_b32 v{vS+2*mi+1}, 0x3727c5ac
            v_fmac_f32 v{vS+2*mi+1}, 0x3a800000, v{a}
            v_rsq_f32 v{vS+2*mi}, v{vS+2*mi+1}
            v_mul_f32 v{vS+2*mi}, 0xbfb8aa3b, v{vS+2*mi}
            """)
        stamp(k)
        k("s_barrier")
        def woff(ni, kk, j):
            t = t0 + ni
            return kk*3584 + ((3*j + (t >> 1))*256 + (t & 1)*32 if t < 6 else 6*256 + j*32)
        g = Gemm(k, 2, Nt, 2, 1, S, 32, STG, lambda mi, ni: acc0 + 16*(mi*Nt+ni), xf, wf, vXa, vWa, vXl, vWl,
                 xoff=lambda mi, kk: mi*2048 + kk*1024, woff=woff, dma=dma.issue, npieces=npc, bpos=bpos, rpg=rpg)
        g.run()
        srd(k, 8, 24, WS_ACT, 14 * MB)
        k("s_mul_i32 s37, s37, 224*1024")
        for ni in range(Nt):
            t = t0 + ni
            if t < 6: k(f"s_add_u32 s44, s35, {16*t}")
            else: k("s_mov_b32 s44, s36")
            k("s_lshl_b32 s44, s44, 6")
            k("s_add_u32 s44, s44, s37")
            k("s_add_u32 s45, s44, 224*1024")
            for mi in range(2):
                a = acc0 + 16*(mi*Nt+ni)
                T = xf[0]
                for r in range(8): k(f"v_mul_f32 v{T+r}, v{a+r}, v{vS+2*mi}")
                for r in range(8): k(f"v_exp_f32 v{T+r}, v{T+r}")
                for r in range(8): k(f"v_mul_f32 v{a+r}, v{a+r}, v{a+8+r}")
                for r in range(8): k(f"v_fma_f32 v{T+r}, v{T+r}, v{vS+2*mi+1}, v{vS+2*mi+1}")
                for r in range(8): k(f"v_rcp_f32 v{T+r}, v{T+r}")
                for r in range(8): k(f"v_mul_f32 v{a+r}, v{a+r}, v{T+r}")
                for r in range(4): k(f"v_cvt_pk_bf16_f32 v{a+8+r}, v{a+2*r}, v{a+2*r+1}")
                k(f"buffer_store_dwordx4 {vr(a+8, 4)}, v{vT}, s[8:11], s{44+mi} offen{STA}")
        if STAMP: stamp(k); k("s_waitcnt vmcnt(0)"); stamp_out(k, 24, 4)
        k("s_endpgm")
    path(False)
    k("gu_b:")
    path(True)
    tail(k)
    k.lds = S * STG + 1024
    return k

def k_attn(prefetch=True):
    S = 4
    FLAG = 65536
    k = Kern("attn_kernel", (256, 1, 1), (512, 1, 1), 65536 + 64, vgpr=128)
    head(k, 256, [("ws", 6), ("wg", 44), ("wu", 46), ("wd", 48), ("wo", 50)])
    al = Alloc(4)
    qf = al(8, 4); negm = al(16, 4); sa = [al(16, 4), al(16, 4)]; P = al(8, 4); O = al(16, 4); L = al(4, 4)
    sel = al(4, 4); kf = al(8, 4); vf = al(8, 4); rm = al(16, 4); pf = al(4, 4); ones = al(4, 4); vT = al(); vK = al()
    k.vgpr = al.n
    k(f"""
    s_lshl_b32 s30, s90, 2
    s_lshr_b32 s31, s91, 3
    s_add_u32 s30, s30, s31
    s_and_b32 s31, s91, 7
    s_lshl_b32 s32, s30, 17
    s_lshl_b32 s33, s31, 3
    s_add_u32 s33, s33, s3
    v_lshlrev_b32 v{vT}, 4, v0
    s_lshl_b32 s34, s3, 10
    v_add_u32 v{vK}, s34, v{vT}
    s_lshl_b32 s35, s33, 11
    s_waitcnt lgkmcnt(0)
    """)
    srd(k, 8, 6, WS_Q, 131072, soff=32)
    srd(k, 12, 6, WS_K, 131072, soff=32)
    srd(k, 16, 6, WS_V, 131072, soff=32)
    def dma(slot):
        return [f"s_add_u32 m0, s34, {slot*16384}", "s_nop 0",
                f"buffer_load_dwordx4 v{vK}, s[12:15], s37 offen lds",
                f"s_add_u32 m0, s34, {slot*16384 + 8192}", "s_nop 0",
                f"buffer_load_dwordx4 v{vK}, s[16:19], s37 offen lds",
                "s_add_u32 s37, s37, 8192"]
    PF = [f"buffer_load_dwordx4 {vr(pf,4)}, v{vT}, s[24:27], s41 offen", "s_add_u32 s41, s41, 1024"] if prefetch else []
    npf = 1 if prefetch else 0
    EXS = [f"buffer_store_dwordx4 {vr(ones,4)}, v{vT}, s[52:55], s42 offen sc1", "s_add_u32 s42, s42, 1024"]
    k(f"""
    buffer_load_dwordx4 {vr(qf,4)}, v{vT}, s[8:11], s35 offen
    buffer_load_dwordx4 {vr(qf+4,4)}, v{vT}, s[8:11], s35 offen offset:1024
    s_mov_b32 s36, 1
    s_mov_b32 s37, 0
    """)
    for a in dma(0): k(a)
    k(f"""
    s_lshr_b32 s38, s3, 1
    s_movk_i32 s26, 14336
    s_cmp_eq_u32 s38, 1
    s_cselect_b32 s44, s46, s44
    s_cselect_b32 s45, s47, s45
    s_cmp_eq_u32 s38, 2
    s_cselect_b32 s44, s48, s44
    s_cselect_b32 s45, s49, s45
    s_cmp_eq_u32 s38, 3
    s_cselect_b32 s44, s50, s44
    s_cselect_b32 s45, s51, s45
    s_cselect_b32 s26, 4096, s26
    s_lshl_b32 s38, s2, 1
    s_and_b32 s39, s3, 1
    s_add_u32 s38, s38, s39
    s_mul_i32 s38, s38, s26
    s_add_u32 s24, s44, s38
    s_addc_u32 s25, s45, 0
    s_mov_b32 s27, 0x00020000
    s_mov_b32 s41, 0
    """)
    srd(k, 20, 6, WS_MU1, 0x10000 + 0x40000)
    k(f"""
    s_lshl_b32 s38, s30, 7
    s_add_u32 s38, s38, {WS_RM - WS_MU1}
    v_lshrrev_b32 v1, 5, v0
    v_lshlrev_b32 v1, 5, v1
    """)
    for q, off in enumerate((0, 16, 64, 80)):
        k(f"buffer_load_dwordx4 {vr(rm+4*q,4)}, v1, s[20:23], s38 offen offset:{off}")
    k(f"""
    s_lshl_b32 s38, s2, 3
    s_add_u32 s38, s38, s3
    s_lshl_b32 s38, s38, 12
    s_mov_b32 s42, 0
    """)
    srd(k, 52, 6, WS_EX, 4096, soff=38)
    for r in range(4): k(f"v_mov_b32 v{ones+r}, -1")
    k(f"""
    v_bfe_u32 v1, v0, 2, 1
    v_bfe_u32 v2, v0, 4, 1
    v_cmp_eq_u32 vcc, v1, v2
    v_mov_b32 v1, 0x3f803f80
    v_cndmask_b32 v{sel}, 0, v1, vcc
    v_mov_b32 v{sel+1}, v{sel}
    v_mov_b32 v{sel+2}, v{sel}
    v_mov_b32 v{sel+3}, v{sel}
    v_mov_b32 v1, 0
    v_mov_b32 v2, {FLAG}
    ds_write_b32 v2, v1
    s_branch attn_go
    """)
    k("attn_restart:")
    k(f"""
    s_mov_b32 s38, 0
    v_mov_b32 v{negm}, 0xff800000
    attn_scan:
    buffer_load_dwordx4 {vr(kf,4)}, v{vT}, s[12:15], s38 offen
    buffer_load_dwordx4 {vr(kf+4,4)}, v{vT}, s[12:15], s38 offen offset:1024
    s_waitcnt vmcnt(0)
    v_mfma_f32_32x32x16_bf16 {vr(sa[0],16)}, {vr(kf,4)}, {vr(qf,4)}, 0
    v_mfma_f32_32x32x16_bf16 {vr(sa[0],16)}, {vr(kf+4,4)}, {vr(qf+4,4)}, {vr(sa[0],16)}
    s_add_u32 s38, s38, 2048
    """)
    for r in range(0, 16, 2):
        k(f"v_max3_f32 v{negm}, v{sa[0]+r}, v{sa[0]+r+1}, v{negm}")
    k(f"""
    s_cmp_lg_u32 s38, 131072
    s_cbranch_scc1 attn_scan
    s_mov_b32 s37, 0
    """)
    for a in dma(0): k(a)
    for q in range(4): k(f"buffer_load_dwordx4 {vr(pf,4)}, v{vT}, s[12:15], 0 offen")
    k("attn_go:")
    for s in range(1, S - 1):
        for a in dma(s) + PF: k(a)
    for r in range(16): k(f"v_mov_b32 v{O+r}, 0")
    for r in range(4): k(f"v_mov_b32 v{L+r}, 0")
    for r in range(4): k(f"v_mov_b32 v{P+4+r}, 0")
    for r in range(4): k(f"v_mov_b32 v{vf+4+r}, 0")
    k(f"""
    s_waitcnt vmcnt({4 + (2+npf)*(S-2)}) lgkmcnt(0)
    s_barrier
    ds_read_b128 {vr(kf,4)}, v{vT}
    ds_read_b128 {vr(kf+4,4)}, v{vT} offset:1024
    ds_read_b128 {vr(vf,4)}, v{vT} offset:8192
    s_waitcnt lgkmcnt(2)
    v_mfma_f32_32x32x16_bf16 {vr(sa[0],16)}, {vr(kf,4)}, {vr(qf,4)}, 0
    s_waitcnt lgkmcnt(1)
    v_mfma_f32_32x32x16_bf16 {vr(sa[0],16)}, {vr(kf+4,4)}, {vr(qf+4,4)}, {vr(sa[0],16)}
    ds_read_b128 {vr(kf,4)}, v{vT} offset:2048
    ds_read_b128 {vr(kf+4,4)}, v{vT} offset:3072
    s_mov_b32 s39, 4
    s_cmp_lg_u32 s36, 1
    s_cbranch_scc1 attn_havemax
    v_max_f32 v{negm}, v{sa[0]}, v{sa[0]+1}
    """)
    for r in range(2, 16, 2):
        k(f"v_max3_f32 v{negm}, v{sa[0]+r}, v{sa[0]+r+1}, v{negm}")
    k(f"""
    attn_havemax:
    v_mov_b32 v1, v{negm}
    v_permlane32_swap_b32 v{negm}, v1
    v_max_f32 v1, v{negm}, v1
    """)
    for r in range(16): k(f"v_sub_f32 v{negm+r}, 0, v1")
    for r in range(16): k(f"v_sub_f32 v{sa[0]+r}, v{sa[0]+r}, v1")
    k("s_waitcnt lgkmcnt(0)")
    stamp(k)
    k(""".p2align 4
    attn_loop:
    """)
    def koff(t, j): t %= 16; return (t >> 2)*16384 + (t & 3)*2048 + j*1024
    def voff(t, j): return koff(t, j) + 8192
    for t in range(16):
        c, n = sa[t & 1], sa[(t & 1) ^ 1]
        pre = []
        if t & 3 == 2:
            k(f"s_waitcnt vmcnt({(2+npf)*(S-3) + npf})")
            k("s_barrier")
            lab = k.label('ex')
            pre = dma(((t >> 2) + S - 1) % S) + PF + ['s_cmp_lt_u32 s42, 4096', f's_cbranch_scc0 {lab}'] + EXS + [f'{lab}:']
        E = lambda a, b: [k(f"v_exp_f32 v{c+r}, v{c+r}") for r in range(a, b)]
        C = lambda a, b: [k(f"v_cvt_pk_bf16_f32 v{P+r}, v{c+2*r}, v{c+2*r+1}") for r in range(a, b)]
        k("s_waitcnt lgkmcnt(3)")
        k(f"v_mfma_f32_32x32x16_bf16 {vr(n,16)}, {vr(kf,4)}, {vr(qf,4)}, {vr(negm,16)}")
        k(f"ds_read_b128 {vr(kf,4)}, v{vT} offset:{koff(t+2, 0)}")
        E(0, 4)
        for a in pre[:3]: k(a)
        k("s_waitcnt lgkmcnt(3)")
        k(f"v_mfma_f32_32x32x16_bf16 {vr(O,16)}, {vr(vf+4,4)}, {vr(P+4,4)}, {vr(O,16)}")
        k(f"ds_read_b128 {vr(vf+4,4)}, v{vT} offset:{voff(t, 1)}")
        E(4, 8)
        k(f"v_mfma_f32_16x16x32_bf16 {vr(L,4)}, {vr(sel,4)}, {vr(P+4,4)}, {vr(L,4)}")
        C(0, 4)
        for a in pre[3:7]: k(a)
        k("s_waitcnt lgkmcnt(3)")
        k(f"v_mfma_f32_32x32x16_bf16 {vr(n,16)}, {vr(kf+4,4)}, {vr(qf+4,4)}, {vr(n,16)}")
        k(f"ds_read_b128 {vr(kf+4,4)}, v{vT} offset:{koff(t+2, 1)}")
        E(8, 12)
        for a in pre[7:]: k(a)
        k("s_waitcnt lgkmcnt(3)")
        k(f"v_mfma_f32_32x32x16_bf16 {vr(O,16)}, {vr(vf,4)}, {vr(P,4)}, {vr(O,16)}")
        k(f"ds_read_b128 {vr(vf,4)}, v{vT} offset:{voff(t+1, 0)}")
        E(12, 16)
        k(f"v_mfma_f32_16x16x32_bf16 {vr(L,4)}, {vr(sel,4)}, {vr(P,4)}, {vr(L,4)}")
        C(4, 8)
    k(f"""
    s_sub_u32 s39, s39, 1
    s_cmp_lg_u32 s39, 0
    s_cbranch_scc1 attn_loop
    s_waitcnt lgkmcnt(0)
    """)
    stamp(k)
    k(f"""
    v_mfma_f32_32x32x16_bf16 {vr(O,16)}, {vr(vf+4,4)}, {vr(P+4,4)}, {vr(O,16)}
    v_mfma_f32_16x16x32_bf16 {vr(L,4)}, {vr(sel,4)}, {vr(P+4,4)}, {vr(L,4)}
    s_waitcnt vmcnt(0)
    s_nop 7
    v_rcp_f32 v1, v{L}
    """)
    for r in range(16): k(f"v_mul_f32 v{O+r}, v{O+r}, v1")
    k(f"""
    s_cmp_lg_u32 s36, 1
    s_cbranch_scc1 attn_store
    v_max3_f32 v2, |v{O}|, |v{O+1}|, |v{L}|
    """)
    k(f"v_mul_f32 v2, 0, v2")
    for r in range(2, 16): k(f"v_fma_f32 v2, 0, v{O+r}, v2")
    k(f"""
    v_fma_f32 v2, 0, v{O}, v2
    v_fma_f32 v2, 0, v{O+1}, v2
    v_add_f32 v2, v2, v{L}
    s_mov_b32 s40, 0x5d800000
    v_cmp_nlt_f32 vcc, v2, s40
    s_nop 1
    s_cbranch_vccz attn_vote
    v_mov_b32 v1, 1
    v_mov_b32 v2, {FLAG}
    ds_write_b32 v2, v1
    attn_vote:
    v_mov_b32 v2, {FLAG}
    s_waitcnt lgkmcnt(0)
    s_barrier
    ds_read_b32 v1, v2
    s_waitcnt lgkmcnt(0)
    v_readfirstlane_b32 s40, v1
    s_cmp_eq_u32 s40, 0
    s_cbranch_scc1 attn_store
    s_mov_b32 s36, 64
    s_branch attn_restart
    attn_store:
    s_lshl_b32 s35, s33, 6
    s_lshl_b32 s40, s30, 1
    s_add_u32 s35, s35, s40
    s_lshl_b32 s35, s35, 10
    """)
    srd(k, 8, 6, WS_O, 4 * MB)
    k(f"v_mul_f32 v1, v{O}, v{rm}")
    k(f"v_mul_f32 v2, v{O+1}, v{rm+1}")
    for r in range(2, 16, 2):
        k(f"v_fmac_f32 v1, v{O+r}, v{rm+r}")
        k(f"v_fmac_f32 v2, v{O+r+1}, v{rm+r+1}")
    for r in range(8): k(f"v_cvt_pk_bf16_f32 v{O+r}, v{O+2*r}, v{O+2*r+1}")
    k(f"buffer_store_dwordx4 {vr(O,4)}, v{vT}, s[8:11], s35 offen{ST}")
    k(f"buffer_store_dwordx4 {vr(O+4,4)}, v{vT}, s[8:11], s35 offen offset:1024{ST}")
    k("v_add_f32 v1, v1, v2")
    xlane_sum(k, 1, 2, (5,))
    k(f"""
    s_lshl_b32 s35, s33, 12
    s_lshr_b32 s40, s30, 2
    s_lshl_b32 s40, s40, 9
    s_add_u32 s35, s35, s40
    s_and_b32 s40, s30, 3
    s_lshl_b32 s40, s40, 2
    s_add_u32 s35, s35, s40
    s_add_u32 s35, s35, {WS_MUP - WS_MU1}
    s_mov_b32 exec_hi, 0
    buffer_store_dword v1, v{vT}, s[20:23], s35 offen
    """)
    if STAMP: stamp(k); k("s_waitcnt vmcnt(0)"); stamp_out(k, 6, 4)
    tail(k)
    return k

def build_all():
    first = [k_ln1(), k_qkv()] if os.environ.get("OLDQKV") else [k_qkv2(**eval(os.environ.get("QKVP", "{}")))]
    return first + [k_attn(), k_n64("wo", 1024, "wo", WS_O), k_gu(), k_down2(rot=bool(os.environ.get("ROT")), **eval(os.environ.get("DOWNP", "{}")))]

if __name__ == "__main__":
    out = sys.argv[1] if len(sys.argv) > 1 else "sequential_preLN__mha_block__swiglu_ffn__prompt.s"
    ks = build_all()
    txt = emit(ks)
    open(out, "w").write(txt)
    for k in ks: print(k.name, "vgpr", k.vgpr, "lds", k.lds, "lines", len(k.lines), "nops", k.nops_added)
```
